```python
import torch

def _softmax(x, axis=-1):
    return torch.softmax(x, dim=axis)
def _gelu(x):
    return torch.nn.functional.gelu(x, approximate="tanh")
def _silu(x):
    return torch.nn.functional.silu(x)
def _sigmoid(x):
    return torch.sigmoid(x)
def _layernorm(x, axis=-1, eps=1e-5):
    m = x.mean(dim=axis, keepdim=True)
    v = x.var(dim=axis, keepdim=True, unbiased=False)
    return (x - m) / torch.sqrt(v + eps)
def _scatter_add(tgt, idx, src, axis=0):
    return tgt.clone().index_add_(axis, idx, src)
def _segment_sum(src, seg, n):
    out = torch.zeros((n,) + src.shape[1:], dtype=src.dtype)
    return out.index_add_(0, seg, src)
def _pad(x, pw):
    flat = tuple(v for pair in reversed(pw) for v in pair)
    return torch.nn.functional.pad(x, flat)

kernel_name = 'recurrent_scan__spectral_fnet__glu_gated_bilinear__prompt'

def setup_inputs():

    _w = (lambda a: (lambda t: t.to(torch.bfloat16) if t.is_floating_point() else t)(torch.as_tensor(a)))
    def _A_setup():
        B, S, D = 1, 2048, 512
        ns = torch.arange(S)[:, None] * torch.arange(S)[None, :]
        nd = torch.arange(D)[:, None] * torch.arange(D)[None, :]
        Ws_re = torch.cos(-2.0 * torch.pi * ns / S).to(float)
        Ws_im = torch.sin(-2.0 * torch.pi * ns / S).to(float)
        Wd_re = torch.cos(-2.0 * torch.pi * nd / D).to(float)
        Wd_im = torch.sin(-2.0 * torch.pi * nd / D).to(float)
        return {
            "x": _w((lambda *s: torch.randn(*s, dtype=torch.bfloat16) * 0.05)(B, S, D)),
            "dft_seq_re": _w(Ws_re),
            "dft_seq_im": _w(Ws_im),
            "dft_hid_re": _w(Wd_re),
            "dft_hid_im": _w(Wd_im),
        }
    _A_in = _A_setup()

    def _B_setup():
        B, S, D, F = 1, 2048, 512, 1376
        return {
            "x": _w((lambda *s: torch.randn(*s, dtype=torch.bfloat16) * 0.05)(B, S, D)),
            "w_gate": _w((lambda *s: torch.randn(*s, dtype=torch.bfloat16) * 0.05)(D, F) * (D ** -0.5)),
            "w_up": _w((lambda *s: torch.randn(*s, dtype=torch.bfloat16) * 0.05)(D, F) * (D ** -0.5)),
            "w_down": _w((lambda *s: torch.randn(*s, dtype=torch.bfloat16) * 0.05)(F, D) * (F ** -0.5)),
        }
    _B_in = _B_setup()

    return {
        "A_x": _A_in["x"],
        "A_dft_seq_re": _A_in["dft_seq_re"],
        "A_dft_seq_im": _A_in["dft_seq_im"],
        "A_dft_hid_re": _A_in["dft_hid_re"],
        "A_dft_hid_im": _A_in["dft_hid_im"],
        "B_x": _B_in["x"],
        "B_w_gate": _B_in["w_gate"],
        "B_w_up": _B_in["w_up"],
        "B_w_down": _B_in["w_down"],
    }

def reference(A_x, A_dft_seq_re, A_dft_seq_im, A_dft_hid_re, A_dft_hid_im, B_x, B_w_gate, B_w_up, B_w_down):
    def _A_ref(x, dft_seq_re, dft_seq_im, dft_hid_re, dft_hid_im):
        a = torch.einsum("bsd,ed->bse", x, dft_hid_re)
        b = torch.einsum("bsd,ed->bse", x, dft_hid_im)
        y = torch.einsum("ts,bse->bte", dft_seq_re, a) - torch.einsum("ts,bse->bte", dft_seq_im, b)
        return y

    def _B_ref(x, w_gate, w_up, w_down):
        g = torch.einsum("bsd,df->bsf", x, w_gate)
        u = torch.einsum("bsd,df->bsf", x, w_up)
        h = g * u
        return torch.einsum("bsf,fd->bsd", h, w_down)

    x = A_x
    xn = _layernorm(x, axis=-1)
    s = _A_ref(xn, A_dft_seq_re, A_dft_seq_im, A_dft_hid_re, A_dft_hid_im)
    g = _silu(_B_ref(xn, B_w_gate, B_w_up, B_w_down))
    return x + s * g
```

```python
import sys

KNAME = 'recurrent_scan__spectral_fnet__glu_gated_bilinear__prompt'

HEADER = open('cdna_kernels/' + KNAME + '.s.ref').read().split('; Override launch')[0]


class A:
    def __init__(self):
        self.l = []

    def __call__(self, s):
        for line in s.strip('\n').split('\n'):
            self.l.append(line if line.rstrip().endswith(':') else '    ' + line.strip())

    def text(self):
        return '\n'.join(self.l) + '\n'


def vr(b, n):
    return f'v[{b}:{b + n - 1}]'


H_BYTES = 64 * 86 * 1024
U_OFF = 0x600000
WS_BYTES = 0x800000

SX, SW, SD, SWS, SO = 8, 12, 16, 20, 24
S_W, S_TQ, S_BG, S_RB, S_CS, S_S0, S_F0 = 33, 34, 35, 36, 37, 38, 39
S_XO, S_WO, S_MX, S_MW = 40, 41, 42, 43
S_T0, S_T1, S_T2, S_T3 = 44, 45, 46, 47
S_HO = 48

XR, WR, FM = 0, 49152, 122880
CS, ST, RS = 155648, 156672, 160768
UB = 0


def srd(a, s, nbytes):
    a(f's_and_b32 s{s + 1}, s{s + 1}, 0xffff')
    a(f's_mov_b32 s{s + 2}, {nbytes}')
    a(f's_mov_b32 s{s + 3}, 0x20000')


def residues(a, rb, ra, rbb):
    a(f's_mov_b32 s{ra}, s{rb}')
    a(f's_sub_u32 s{rbb}, 32, s{rb}')
    a(f's_cmp_eq_u32 s{rb}, 0')
    a(f's_cselect_b32 s{rbb}, 16, s{rbb}')


V_L = 0
V_XD = 1
V_WD = 3
V_XA = 6
V_WA = 10
V_S1, V_S1B, V_S2, V_S2B = 12, 13, 14, 15
V_T = 16
V_SEL = 24
V_CSA = 28
V_ACC = 40
V_WF = 88
V_XF = 112


def dma_stage(a, s):
    slot = s % 3
    a(f's_add_u32 m0, s{S_MX}, {slot * 16384}')
    a(f's_mov_b32 s{S_XO}, {s * 128}')
    a(f'buffer_load_dwordx4 v{V_XD}, s[{SX}:{SX + 3}], s{S_XO} offen lds')
    a(f'buffer_load_dwordx4 v{V_XD + 1}, s[{SX}:{SX + 3}], s{S_XO} offen offset:1024 lds')
    a(f's_add_u32 m0, s{S_MW}, {slot * 24576}')
    a(f's_mov_b32 s{S_WO}, {s * 64 * 2752}')
    for i in range(3):
        off = f' offset:{i * 1024}' if i else ''
        a(f'buffer_load_dwordx4 v{V_WD + i}, s[{SW}:{SW + 3}], s{S_WO} offen{off} lds')


def xreg(bg, n):
    return V_XF + 4 * n if bg else V_XF + 4 * (n & 1)


def frag_reads(bg, n):
    s, k = n >> 2, n & 3
    slot = s % 3
    out = [f'ds_read_b128 {vr(xreg(bg, n), 4)}, v{V_XA + k} offset:{slot * 16384}']
    for bi in range(3):
        b = 3 * bg + bi
        for u in range(2):
            off = slot * 24576 + (16 * k + 4 * u) * 192 + 64 * (b >> 1)
            out.append(f'ds_read_b64_tr_b16 {vr(V_WF + 12 * (n & 1) + 4 * bi + 2 * u, 2)}, v{V_WA + (b & 1)} offset:{off}')
    return out


def stat_ops(x):
    out = []
    for i in range(4):
        lo, hi = V_T + 2 * (i & 1), V_T + 2 * (i & 1) + 1
        out += [f'v_lshlrev_b32 v{lo}, 16, v{x + i}',
                f'v_and_b32 v{hi}, 0xffff0000, v{x + i}',
                f'v_add_f32 v{V_S1}, v{V_S1}, v{lo}',
                f'v_add_f32 v{V_S1B}, v{V_S1B}, v{hi}',
                f'v_fmac_f32 v{V_S2}, v{lo}, v{lo}',
                f'v_fmac_f32 v{V_S2B}, v{hi}, v{hi}']
    return out


def p1_loop(a, bg):
    for n in range(32):
        s, k = n >> 2, n & 3
        a('s_waitcnt lgkmcnt(0)')
        if k == 3 and s < 7:
            a(f's_waitcnt vmcnt({5 if s < 6 else 0})')
            a('s_barrier')
            if s + 3 < 8:
                dma_stage(a, s + 3)
        reads = frag_reads(bg, n + 1) if n < 31 else []
        valu = stat_ops(xreg(bg, n)) if (n & 1) == bg else []
        for bi in range(3):
            w = V_WF + 12 * (n & 1) + 4 * bi
            c = '0' if n == 0 else vr(V_ACC + 16 * bi, 16)
            a(f'v_mfma_f32_32x32x16_bf16 {vr(V_ACC + 16 * bi, 16)}, {vr(w, 4)}, {vr(xreg(bg, n), 4)}, {c}')
            for r in reads[(0, 3, 5)[bi]:(3, 5, 7)[bi]]:
                a(r)
            for v in valu[8 * bi:8 * bi + 8]:
                a(v)
        a(f's_cmp_eq_u32 s{S_TQ}, {k}')
        a(f's_cbranch_scc0 L_nocs_{bg}_{n}')
        for bi in range(3):
            w = V_WF + 12 * (n & 1) + 4 * bi
            c = '0' if s == 0 else vr(V_CSA + 4 * bi, 4)
            a(f'v_mfma_f32_16x16x32_bf16 {vr(V_CSA + 4 * bi, 4)}, {vr(V_SEL, 4)}, {vr(w, 4)}, {c}')
        a(f'L_nocs_{bg}_{n}:')


def p1_epilogue_h(a, bg):
    t = V_T
    a(f'v_add_f32 v{V_S1}, v{V_S1}, v{V_S1B}')
    a(f'v_add_f32 v{V_S1B}, v{V_S2}, v{V_S2B}')
    a(f'v_and_b32 v{t}, 31, v{V_L}')
    a(f'v_lshrrev_b32 v{t + 1}, 5, v{V_L}')
    a(f's_lshl_b32 s{S_T0}, s{S_TQ}, 10')
    a(f's_add_u32 s{S_T0}, s{S_T0}, {ST}')
    a(f'v_lshl_add_u32 v{t + 2}, v{t}, 5, s{S_T0}')
    a(f'v_lshl_add_u32 v{t + 3}, v{t + 1}, 3, v{t + 2}')
    a(f'ds_write_b64 v{t + 3}, {vr(V_S1, 2)} offset:{16 * bg}')
    a(f'v_lshlrev_b32 v{t + 4}, 2, v{V_L}')
    a(f'v_add_u32 v{t + 4}, {CS + 384 * bg}, v{t + 4}')
    a('s_nop 4')
    a('s_mov_b64 exec, 0xffff')
    for bi in range(3):
        a(f'ds_add_f32 v{t + 4}, v{V_CSA + 4 * bi} offset:{128 * bi}')
        a(f'ds_add_f32 v{t + 4}, v{V_CSA + 4 * bi + 1} offset:{128 * bi + 64}')
    a('s_mov_b64 exec, -1')
    a(f'v_lshlrev_b32 v{t + 5}, 4, v{t + 1}')
    a(f'v_add_u32 v{t + 5}, {CS + 384 * bg}, v{t + 5}')
    a('s_waitcnt lgkmcnt(0)')
    a('s_barrier')
    p = V_WF
    c = V_CSA - 4
    a(f'ds_read_b128 {vr(p, 4)}, v{t + 2}')
    a(f'ds_read_b128 {vr(p + 4, 4)}, v{t + 2} offset:16')
    for i in range(4):
        a(f'ds_read_b128 {vr(c + 4 * i, 4)}, v{t + 5} offset:{32 * i}')
    a('s_waitcnt lgkmcnt(4)')
    a(f'v_add_f32 v{p}, v{p}, v{p + 2}')
    a(f'v_add_f32 v{p + 1}, v{p + 1}, v{p + 3}')
    a(f'v_add_f32 v{p + 4}, v{p + 4}, v{p + 6}')
    a(f'v_add_f32 v{p + 5}, v{p + 5}, v{p + 7}')
    a(f'v_add_f32 v{p}, v{p}, v{p + 4}')
    a(f'v_add_f32 v{p + 1}, v{p + 1}, v{p + 5}')
    nm, r2, rs = V_S1, V_S2, V_S2B
    a(f'v_mul_f32 v{nm}, 0xbb000000, v{p}')
    a(f'v_mul_f32 v{p + 1}, 0x3b000000, v{p + 1}')
    a(f'v_fma_f32 v{p + 1}, -v{nm}, v{nm}, v{p + 1}')
    a(f'v_max_f32 v{p + 1}, 0, v{p + 1}')
    a(f'v_add_f32 v{p + 1}, 0x3727c5ac, v{p + 1}')
    a(f'v_rcp_f32 v{r2}, v{p + 1}')
    a(f'v_rsq_f32 v{rs}, v{p + 1}')
    a(f'v_lshlrev_b32 v{t + 6}, 4, v{V_L}')
    for bi in range(3):
        acc = V_ACC + 16 * bi
        a('s_waitcnt lgkmcnt(0)')
        for v in range(16):
            a(f'v_fmac_f32 v{acc + v}, v{nm}, v{c + v}')
        if bi < 2:
            for i in range(4):
                a(f'ds_read_b128 {vr(c + 4 * i, 4)}, v{t + 5} offset:{128 * (bi + 1) + 32 * i}')
        for v in range(8):
            a(f'v_mul_f32 v{acc + v}, v{r2}, v{acc + v}')
        for v in range(8):
            a(f'v_mul_f32 v{acc + v}, v{acc + v}, v{acc + 8 + v}')
        for i in range(4):
            a(f'v_cvt_pk_bf16_f32 v{acc + 8 + i}, v{acc + 2 * i}, v{acc + 2 * i + 1}')
        if bg == 1 and bi == 1:
            a(f's_cbranch_vccnz L_skip_dup')
        off = f' offset:{1024 * bi}' if bi else ''
        a(f'buffer_store_dwordx4 {vr(acc + 8, 4)}, v{t + 6}, s[{SWS}:{SWS + 3}], s{S_HO} offen{off}')


def p1_dft(a):
    t = V_T
    rs = V_S2B
    da = V_ACC
    ff = V_WF
    a(f'v_and_b32 v{t}, 31, v{V_L}')
    a(f's_lshl_b32 s{S_T0}, s{S_TQ}, 7')
    a(f's_add_u32 s{S_T0}, s{S_T0}, {RS}')
    a(f'v_lshl_add_u32 v{t}, v{t}, 2, s{S_T0}')
    a(f'ds_write_b32 v{t}, v{rs}')
    a(f'v_lshlrev_b32 v{t + 1}, 4, v{V_L}')
    a(f'v_add_u32 v{t + 1}, {FM}, v{t + 1}')
    for n in range(3):
        a(f'ds_read_b128 {vr(ff + 4 * n, 4)}, v{t + 1} offset:{1024 * n}')
    cm, sm = V_ACC + 16, V_ACC + 24
    gen = []
    gen.append(f'v_and_b32 v{t + 2}, 31, v{V_L}')
    gen.append(f'v_cvt_f32_u32 v{t + 2}, v{t + 2}')
    gen.append(f'v_mul_f32 v{t + 2}, 0x3d000000, v{t + 2}')
    gen.append(f'v_lshrrev_b32 v{t + 3}, 5, v{V_L}')
    gen.append(f'v_lshlrev_b32 v{t + 3}, 2, v{t + 3}')
    gen.append(f'v_cvt_f32_u32 v{t + 3}, v{t + 3}')
    gen.append(f'v_mul_f32 v{t + 3}, v{t + 3}, v{t + 2}')
    c0, c1, s0, s1 = V_CSA, V_CSA + 1, V_CSA + 2, V_CSA + 3
    for i in range(8):
        j0 = 8 * (i >> 1) + 2 * (i & 1)
        gen.append(f'v_fmamk_f32 v{t + 4}, v{t + 2}, {float_hex(j0)}, v{t + 3}')
        gen.append(f'v_add_f32 v{t + 5}, v{t + 4}, v{t + 2}')
        gen.append(f'v_cos_f32 v{c0}, v{t + 4}')
        gen.append(f'v_cos_f32 v{c1}, v{t + 5}')
        gen.append(f'v_sin_f32 v{s0}, v{t + 4}')
        gen.append(f'v_sin_f32 v{s1}, v{t + 5}')
        gen.append(f'v_cvt_pk_bf16_f32 v{cm + i}, v{c0}, v{c1}')
        gen.append(f'v_cvt_pk_bf16_f32 v{sm + i}, v{s0}, v{s1}')
    gi = 0
    for n in range(32):
        if n + 3 < 32:
            a(f'ds_read_b128 {vr(ff + 4 * ((n + 3) & 3), 4)}, v{t + 1} offset:{1024 * (n + 3)}')
        a(f's_waitcnt lgkmcnt({min(3, 31 - n)})')
        c = '0' if n == 0 else vr(da, 16)
        a(f'v_mfma_f32_32x32x16_bf16 {vr(da, 16)}, {vr(V_XF + 4 * n, 4)}, {vr(ff + 4 * (n & 3), 4)}, {c}')
        for g in gen[gi:gi + 3]:
            a(g)
        gi += 3
    assert gi >= len(gen)
    rj = V_XF
    a(f'v_lshrrev_b32 v{t + 2}, 5, v{V_L}')
    a(f'v_lshl_add_u32 v{t + 2}, v{t + 2}, 4, s{S_T0}')
    for i in range(4):
        a(f'ds_read_b128 {vr(rj + 4 * i, 4)}, v{t + 2} offset:{32 * i}')
    a(f'v_and_b32 v{t + 3}, 16, v{V_L}')
    a(f'v_lshlrev_b32 v{t + 3}, 11, v{t + 3}')
    a(f'v_mul_u32_u24 v{t + 3}, 0x10001, v{t + 3}')
    a('s_nop 4')
    a('s_waitcnt lgkmcnt(0)')
    z, zs = V_XF + 16, V_XF + 24
    for v in range(16):
        a(f'v_mul_f32 v{da + v}, v{da + v}, v{rj + v}')
    for i in range(8):
        a(f'v_cvt_pk_bf16_f32 v{z + i}, v{da + 2 * i}, v{da + 2 * i + 1}')
    for i in range(8):
        a(f'ds_swizzle_b32 v{zs + i}, v{z + i} offset:0x401F')
    a(f'v_mfma_f32_32x32x16_bf16 {vr(da, 16)}, {vr(cm, 4)}, {vr(z, 4)}, 0')
    a(f'v_mfma_f32_32x32x16_bf16 {vr(da, 16)}, {vr(cm + 4, 4)}, {vr(z + 4, 4)}, {vr(da, 16)}')
    a('s_waitcnt lgkmcnt(0)')
    for i in range(8):
        a(f'v_xor_b32 v{zs + i}, v{zs + i}, v{t + 3}')
    a('s_nop 1')
    a(f'v_mfma_f32_32x32x16_bf16 {vr(da, 16)}, {vr(sm, 4)}, {vr(zs, 4)}, {vr(da, 16)}')
    a(f'v_mfma_f32_32x32x16_bf16 {vr(da, 16)}, {vr(sm + 4, 4)}, {vr(zs + 4, 4)}, {vr(da, 16)}')
    a(f'v_and_b32 v{t + 4}, 15, v{V_L}')
    a(f'v_lshlrev_b32 v{t + 4}, 4, v{t + 4}')
    a(f'v_and_b32 v{t + 5}, 16, v{V_L}')
    a(f'v_lshl_add_u32 v{t + 4}, v{t + 5}, 8, v{t + 4}')
    a(f'v_lshrrev_b32 v{t + 5}, 5, v{V_L}')
    a(f'v_lshl_add_u32 v{t + 4}, v{t + 5}, 10, v{t + 4}')
    a(f's_lshl_b32 s{S_T1}, s{S_TQ}, 2')
    a(f's_add_u32 s{S_T1}, s{S_T1}, {UB}')
    a(f'v_add_u32 v{t + 4}, s{S_T1}, v{t + 4}')
    a('s_nop 3')
    for i in range(8):
        a(f'v_permlane16_swap_b32 v{da + i}, v{da + 8 + i}')
    for i in range(8):
        a(f'v_cvt_pk_bf16_f32 v{z + i}, v{da + i}, v{da + 8 + i}')
    for i in range(8):
        a(f'ds_write_b32 v{t + 4}, v{z + i} offset:{(8 * (i >> 2) + (i & 3)) * 256}')
    a('s_waitcnt lgkmcnt(0)')
    a('s_barrier')
    a(f's_lshl_b32 s{S_T1}, s{S_TQ}, 6')
    a(f'v_add_u32 v{t}, s{S_T1}, v{V_L}')
    a(f'v_lshlrev_b32 v{t + 1}, 4, v{t}')
    a(f'ds_read_b128 {vr(z, 4)}, v{t + 1} offset:{UB}')
    a(f'ds_read_b128 {vr(z + 4, 4)}, v{t + 1} offset:{UB + 4096}')
    a(f'v_lshrrev_b32 v{t + 2}, 4, v{t}')
    a(f'v_lshlrev_b32 v{t + 2}, 16, v{t + 2}')
    a(f'v_and_b32 v{t + 3}, 15, v{t}')
    a(f'v_lshl_add_u32 v{t + 2}, v{t + 3}, 4, v{t + 2}')
    a(f's_lshl_b32 s{S_T1}, s{S_RB}, 12')
    a(f's_lshl_b32 s{S_T2}, s{S_CS}, 8')
    a(f's_add_u32 s{S_T1}, s{S_T1}, s{S_T2}')
    a(f's_add_u32 s{S_T1}, s{S_T1}, {U_OFF}')
    a(f's_add_u32 s{S_T2}, s{S_T1}, {16 << 16}')
    a('s_waitcnt lgkmcnt(1)')
    a(f'buffer_store_dwordx4 {vr(z, 4)}, v{t + 2}, s[{SWS}:{SWS + 3}], s{S_T1} offen')
    a('s_waitcnt lgkmcnt(0)')
    a(f'buffer_store_dwordx4 {vr(z + 4, 4)}, v{t + 2}, s[{SWS}:{SWS + 3}], s{S_T2} offen')


def float_hex(x):
    import struct
    return hex(struct.unpack('<I', struct.pack('<f', float(x)))[0])


def kernel1():
    a = A()
    a('p1_kernel:')
    a('s_cmp_ge_u32 s2, 256')
    a('s_cbranch_scc1 L_p1_end')
    a(f's_load_dwordx2 s[{SX}:{SX + 1}], s[0:1], 0')
    a('s_load_dwordx4 s[28:31], s[0:1], 48')
    a(f's_load_dwordx2 s[{SWS}:{SWS + 1}], s[0:1], 88')
    t = V_T
    a(f'v_lshrrev_b32 v{t}, 6, v0')
    a(f'v_and_b32 v{V_L}, 63, v0')
    a(f'v_readfirstlane_b32 s{S_W}, v{t}')
    a(f's_and_b32 s{S_T0}, s2, 7')
    a(f's_lshr_b32 s{S_T1}, s2, 3')
    a(f's_and_b32 s{S_RB}, s{S_T0}, 1')
    a(f's_lshl_b32 s{S_RB}, s{S_RB}, 3')
    a(f's_and_b32 s{S_T2}, s{S_T1}, 7')
    a(f's_add_u32 s{S_RB}, s{S_RB}, s{S_T2}')
    a(f's_lshr_b32 s{S_CS}, s{S_T0}, 1')
    a(f's_lshl_b32 s{S_CS}, s{S_CS}, 2')
    a(f's_lshr_b32 s{S_T2}, s{S_T1}, 3')
    a(f's_add_u32 s{S_CS}, s{S_CS}, s{S_T2}')
    a(f's_and_b32 s{S_TQ}, s{S_W}, 3')
    a(f's_lshr_b32 s{S_BG}, s{S_W}, 2')
    residues(a, S_RB, S_T0, S_T1)
    a(f's_cmp_ge_u32 s{S_TQ}, 2')
    a(f's_cselect_b32 s{S_S0}, s{S_T1}, s{S_T0}')
    a(f's_and_b32 s{S_T2}, s{S_TQ}, 1')
    a(f's_lshl_b32 s{S_T2}, s{S_T2}, 5')
    a(f's_add_u32 s{S_S0}, s{S_S0}, s{S_T2}')
    a(f's_mul_i32 s{S_F0}, s{S_CS}, 171')
    a(f's_lshr_b32 s{S_F0}, s{S_F0}, 6')
    a(f's_lshl_b32 s{S_F0}, s{S_F0}, 1')
    a(f'v_lshrrev_b32 v{t}, 3, v{V_L}')
    a(f's_lshl_b32 s{S_T0}, s{S_BG}, 4')
    a(f'v_add_u32 v{t}, s{S_T0}, v{t}')
    a(f'v_and_b32 v{t + 1}, 7, v{V_L}')
    a(f'v_lshrrev_b32 v{t + 2}, 4, v{V_L}')
    a(f'v_xor_b32 v{t + 3}, v{t + 1}, v{t + 2}')
    a(f'v_lshlrev_b32 v{t}, 16, v{t}')
    a(f's_lshl_b32 s{S_T0}, s{S_S0}, 10')
    a(f'v_add_u32 v{t}, s{S_T0}, v{t}')
    a(f'v_lshl_add_u32 v{V_XD}, v{t + 3}, 4, v{t}')
    a(f'v_xor_b32 v{t + 3}, 4, v{t + 3}')
    a(f'v_add_u32 v{t}, {8 * 65536 - 1024}, v{t}')
    a(f'v_lshl_add_u32 v{V_XD + 1}, v{t + 3}, 4, v{t}')
    a(f's_lshl_b32 s{S_MX}, s{S_TQ}, 12')
    a(f's_lshl_b32 s{S_T0}, s{S_BG}, 11')
    a(f's_add_u32 s{S_MX}, s{S_MX}, s{S_T0}')
    a(f's_and_b32 s{S_T0}, s{S_W}, 1')
    a(f's_lshr_b32 s{S_T1}, s{S_W}, 1')
    a(f's_mul_i32 s{S_MW}, s{S_T0}, 12288')
    a(f's_mul_i32 s{S_T2}, s{S_T1}, 3072')
    a(f's_add_u32 s{S_MW}, s{S_MW}, s{S_T2}')
    a(f's_add_u32 s{S_MW}, s{S_MW}, {WR}')
    a(f's_mul_i32 s{S_T1}, s{S_T1}, {16 * 2752}')
    a(f's_lshl_b32 s{S_T2}, s{S_F0}, 5')
    a(f's_add_u32 s{S_T1}, s{S_T1}, s{S_T2}')
    a(f's_lshl_b32 s{S_T2}, s{S_T0}, 1')
    for i in range(3):
        a(f'v_add_u32 v{t}, {64 * i}, v{V_L}')
        a(f'v_mul_u32_u24 v{t + 1}, 171, v{t}')
        a(f'v_lshrrev_b32 v{t + 1}, 11, v{t + 1}')
        a(f'v_mul_u32_u24 v{t + 2}, 12, v{t + 1}')
        a(f'v_sub_u32 v{t + 2}, v{t}, v{t + 2}')
        a(f'v_xor_b32 v{t + 2}, s{S_T2}, v{t + 2}')
        a(f'v_mul_u32_u24 v{t + 1}, 2752, v{t + 1}')
        a(f'v_lshl_add_u32 v{t + 1}, v{t + 2}, 4, v{t + 1}')
        a(f'v_add_u32 v{V_WD + i}, s{S_T1}, v{t + 1}')
        if i:
            a(f'v_subrev_u32 v{V_WD + i}, {1024 * i}, v{V_WD + i}')
    a('s_waitcnt lgkmcnt(0)')
    srd(a, SX, 2097152)
    a(f's_cmp_eq_u32 s{S_T0}, 0')
    a(f's_cselect_b32 s{SW}, s28, s30')
    a(f's_cselect_b32 s{SW + 1}, s29, s31')
    srd(a, SW, 512 * 2752)
    srd(a, SWS, WS_BYTES)
    for s in range(3):
        dma_stage(a, s)
    a(f'v_and_b32 v{t}, 31, v{V_L}')
    a(f'v_lshrrev_b32 v{t + 1}, 5, v{V_L}')
    a(f'v_bfe_u32 v{t + 2}, v{V_L}, 1, 3')
    a(f'v_xor_b32 v{t + 2}, v{t + 2}, v{t + 1}')
    a(f'v_lshlrev_b32 v{t}, 7, v{t}')
    a(f'v_lshl_add_u32 v{t}, v{t + 2}, 4, v{t}')
    a(f's_lshl_b32 s{S_T0}, s{S_TQ}, 12')
    a(f'v_add_u32 v{V_XA}, s{S_T0}, v{t}')
    for k in range(1, 4):
        a(f'v_xor_b32 v{V_XA + k}, {32 * k}, v{V_XA}')
    a(f'v_bfe_u32 v{t}, v{V_L}, 4, 1')
    a(f'v_bfe_u32 v{t + 2}, v{V_L}, 2, 2')
    a(f'v_lshl_add_u32 v{t + 2}, v{t + 1}, 3, v{t + 2}')
    a(f'v_mul_u32_u24 v{t + 2}, 192, v{t + 2}')
    a(f'v_mul_u32_u24 v{t + 3}, {12288 + 32}, v{t}')
    a(f'v_add_u32 v{t + 2}, v{t + 2}, v{t + 3}')
    a(f'v_and_b32 v{t + 3}, 1, v{V_L}')
    a(f'v_lshl_add_u32 v{t + 2}, v{t + 3}, 4, v{t + 2}')
    a(f'v_bfe_u32 v{t + 3}, v{V_L}, 1, 1')
    a(f'v_lshl_add_u32 v{t + 2}, v{t + 3}, 3, v{t + 2}')
    a(f'v_add_u32 v{V_WA}, {WR}, v{t + 2}')
    a(f'v_xor_b32 v{V_WA + 1}, 32, v{V_WA}')
    a(f'v_and_b32 v{t + 2}, 15, v{V_L}')
    a(f'v_cmp_eq_u32 vcc, v{t + 2}, v{t}')
    a(f'v_mov_b32 v{t + 2}, 0x3f803f80')
    a(f'v_mov_b32 v{V_S1}, 0')
    a(f'v_cndmask_b32 v{V_SEL}, 0, v{t + 2}, vcc')
    a(f'v_mov_b32 v{V_S1B}, 0')
    a(f'v_mov_b32 v{V_S2}, 0')
    a(f'v_mov_b32 v{V_S2B}, 0')
    for i in range(1, 4):
        a(f'v_mov_b32 v{V_SEL + i}, v{V_SEL}')
    a(f'v_lshlrev_b32 v{t + 2}, 2, v{V_L}')
    a(f'v_add_u32 v{t + 2}, {CS}, v{t + 2}')
    for i in range(3):
        a(f'ds_write_b32 v{t + 2}, v{V_S1} offset:{256 * i}')
    a(f'v_and_b32 v{t + 2}, 15, v{V_L}')
    a(f's_lshl_b32 s{S_T0}, s{S_CS}, 4')
    a(f'v_add_u32 v{t + 2}, s{S_T0}, v{t + 2}')
    a(f'v_cmp_eq_u32 vcc, 0, v{t + 2}')
    a(f'v_mov_b32 v{t + 3}, 0x100')
    a(f'v_cvt_f32_u32 v{t}, v{t}')
    a(f'v_cndmask_b32 v{t + 2}, v{t + 2}, v{t + 3}, vcc')
    a(f'v_cvt_f32_u32 v{t + 2}, v{t + 2}')
    a(f'v_mul_f32 v{t + 2}, 0x3b000000, v{t + 2}')
    a(f'v_mul_f32 v{t}, 0x3e800000, v{t}')
    a(f's_lshl_b32 s{S_T0}, s{S_W}, 6')
    a(f'v_lshl_add_u32 v{t + 1}, v{t + 1}, 3, s{S_T0}')
    a(f'v_cvt_f32_u32 v{t + 1}, v{t + 1}')
    a(f'v_fmac_f32 v{t}, v{t + 1}, v{t + 2}')
    a(f's_lshl_b32 s{S_T0}, s{S_W}, 12')
    a(f's_add_u32 s{S_T0}, s{S_T0}, {FM}')
    a(f'v_lshl_add_u32 v{t + 1}, v{V_L}, 4, s{S_T0}')
    g = V_ACC
    for n in range(4):
        for q in range(8):
            if q == 0 and n == 0:
                a(f'v_cos_f32 v{g}, v{t}')
            else:
                a(f'v_fmamk_f32 v{t + 3 + (q & 1)}, v{t + 2}, {float_hex(16 * n + q)}, v{t}')
                a(f'v_cos_f32 v{g + q}, v{t + 3 + (q & 1)}')
        a('s_nop 0')
        for i in range(4):
            a(f'v_cvt_pk_bf16_f32 v{g + 8 + 4 * (n & 1) + i}, v{g + 2 * i}, v{g + 2 * i + 1}')
        a(f'ds_write_b128 v{t + 1}, {vr(g + 8 + 4 * (n & 1), 4)} offset:{1024 * n}')
    a(f's_lshl_b32 s{S_HO}, s{S_RB}, 2')
    a(f's_add_u32 s{S_HO}, s{S_HO}, s{S_TQ}')
    a(f's_mul_i32 s{S_HO}, s{S_HO}, 86')
    a(f's_add_u32 s{S_HO}, s{S_HO}, s{S_F0}')
    a(f's_mul_i32 s{S_T0}, s{S_BG}, 3')
    a(f's_add_u32 s{S_HO}, s{S_HO}, s{S_T0}')
    a(f's_lshl_b32 s{S_HO}, s{S_HO}, 10')
    a(f's_lshr_b32 s{S_T0}, 0x1249, s{S_CS}')
    a(f's_and_b32 vcc_lo, s{S_T0}, 1')
    a('s_mov_b32 vcc_hi, 0')
    a('s_waitcnt vmcnt(10) lgkmcnt(0)')
    a('s_barrier')
    a(f's_cmp_eq_u32 s{S_BG}, 0')
    a('s_cbranch_scc0 L_p1_bg1')
    for r in frag_reads(0, 0):
        a(r)
    p1_loop(a, 0)
    p1_epilogue_h(a, 0)
    a('s_barrier')
    a('s_endpgm')
    a('L_p1_bg1:')
    for r in frag_reads(1, 0):
        a(r)
    p1_loop(a, 1)
    p1_epilogue_h(a, 1)
    a('L_skip_dup:')
    p1_dft(a)
    a('L_p1_end:')
    a('s_endpgm')
    return a.text()


S_R, S_CT, S_TH, S_KH, S_WH = 34, 35, 37, 38, 39
YB, PX = 8192, 81920 + 8192
V2_A = 1
V2_T = 6
V2_ACC = 16
V2_WF = 48
V2_X = 64
V2_H = 72


def wd_reads(n):
    slot = n % 40
    hi = slot >= 32
    out = []
    for e in range(2):
        for u in range(2):
            off = (slot & 31) * 2048 + u * 512
            out.append(f'ds_read_b64_tr_b16 {vr(V2_WF + 8 * (n & 1) + 4 * e + 2 * u, 2)}, v{V2_A + e + 2 * hi} offset:{off}')
    return out


def kernel2():
    a = A()
    a('p2_kernel:')
    a('s_cmp_ge_u32 s2, 256')
    a('s_cbranch_scc1 L_p2_end')
    a(f's_load_dwordx2 s[{SX}:{SX + 1}], s[0:1], 0')
    a(f's_load_dwordx2 s[{SD}:{SD + 1}], s[0:1], 64')
    a(f's_load_dwordx2 s[{SO}:{SO + 1}], s[0:1], 72')
    a(f's_load_dwordx2 s[{SWS}:{SWS + 1}], s[0:1], 88')
    t = V2_T
    a(f'v_lshrrev_b32 v{t}, 6, v0')
    a(f'v_and_b32 v{V_L}, 63, v0')
    a(f'v_readfirstlane_b32 s{S_W}, v{t}')
    a(f's_and_b32 s{S_RB}, s2, 7')
    a(f's_lshl_b32 s{S_RB}, s{S_RB}, 1')
    a(f's_lshr_b32 s{S_T0}, s2, 7')
    a(f's_add_u32 s{S_RB}, s{S_RB}, s{S_T0}')
    a(f's_bfe_u32 s{S_WH}, s2, 0x10006')
    a(f's_bfe_u32 s{S_CT}, s2, 0x30003')
    residues(a, S_RB, S_T0, S_T1)
    a(f's_cmp_eq_u32 s{S_WH}, 0')
    a(f's_cselect_b32 s{S_R}, s{S_T0}, s{S_T1}')
    a(f's_and_b32 s{S_TH}, s{S_W}, 1')
    a(f's_bfe_u32 s{S_KH}, s{S_W}, 0x10001')
    a('s_waitcnt lgkmcnt(0)')
    srd(a, SX, 2097152)
    srd(a, SD, 1376 * 1024)
    srd(a, SO, 2097152)
    srd(a, SWS, WS_BYTES)
    a(f's_cmp_ge_u32 s{S_W}, 4')
    a('s_cbranch_scc1 L_p2_y')

    a(f's_lshl_b32 s{S_HO}, s{S_RB}, 2')
    a(f's_lshl_b32 s{S_T0}, s{S_WH}, 1')
    a(f's_add_u32 s{S_HO}, s{S_HO}, s{S_T0}')
    a(f's_add_u32 s{S_HO}, s{S_HO}, s{S_TH}')
    a(f's_mul_i32 s{S_HO}, s{S_HO}, 86')
    a(f's_mul_i32 s{S_T0}, s{S_KH}, 43')
    a(f's_add_u32 s{S_HO}, s{S_HO}, s{S_T0}')
    a(f's_lshl_b32 s{S_HO}, s{S_HO}, 10')
    a(f'v_lshlrev_b32 v{t}, 4, v{V_L}')
    for n in range(43):
        if n and n % 4 == 0:
            a(f's_add_u32 s{S_HO}, s{S_HO}, 4096')
        off = f' offset:{1024 * (n & 3)}' if n & 3 else ''
        a(f'buffer_load_dwordx4 {vr(V2_H + 4 * n, 4)}, v{t}, s[{SWS}:{SWS + 3}], s{S_HO} offen{off}')
    a(f'v_and_b32 v{t + 1}, 31, v{V_L}')
    a(f'v_lshrrev_b32 v{t + 2}, 5, v{V_L}')
    a(f'v_lshlrev_b32 v{t + 1}, 16, v{t + 1}')
    a(f'v_lshl_add_u32 v{t + 1}, v{t + 2}, 5, v{t + 1}')
    a(f's_lshl_b32 s{S_T0}, s{S_TH}, 5')
    a(f's_add_u32 s{S_T0}, s{S_T0}, s{S_R}')
    a(f's_lshl_b32 s{S_T0}, s{S_T0}, 10')
    a(f's_lshl_b32 s{S_T1}, s{S_CT}, 7')
    a(f's_add_u32 s{S_T0}, s{S_T0}, s{S_T1}')
    a(f's_lshl_b32 s{S_T1}, s{S_KH}, 6')
    a(f's_add_u32 s{S_T0}, s{S_T0}, s{S_T1}')
    a(f'v_add_u32 v{t + 1}, s{S_T0}, v{t + 1}')
    a(f'buffer_load_dwordx4 {vr(V2_X, 4)}, v{t + 1}, s[{SX}:{SX + 3}], 0 offen')
    a(f'buffer_load_dwordx4 {vr(V2_X + 4, 4)}, v{t + 1}, s[{SX}:{SX + 3}], 0 offen offset:16')
    a(f'v_bfe_u32 v{t + 3}, v{V_L}, 2, 2')
    a(f'v_lshl_add_u32 v{t + 4}, v{t + 2}, 3, v{t + 3}')
    a(f'v_lshlrev_b32 v{t + 4}, 7, v{t + 4}')
    a(f'v_lshrrev_b32 v{t + 3}, 1, v{t + 3}')
    a(f'v_xor_b32 v{t + 3}, s{S_KH}, v{t + 3}')
    a(f'v_lshl_add_u32 v{t + 4}, v{t + 3}, 6, v{t + 4}')
    a(f'v_and_b32 v{t + 3}, 1, v{V_L}')
    a(f'v_lshl_add_u32 v{t + 4}, v{t + 3}, 5, v{t + 4}')
    a(f'v_bfe_u32 v{t + 3}, v{V_L}, 4, 1')
    a(f'v_lshl_add_u32 v{t + 4}, v{t + 3}, 4, v{t + 4}')
    a(f'v_bfe_u32 v{t + 3}, v{V_L}, 1, 1')
    a(f'v_lshl_add_u32 v{t + 4}, v{t + 3}, 3, v{t + 4}')
    a(f's_mul_i32 s{S_T0}, s{S_KH}, 81920')
    a(f'v_add_u32 v{V2_A}, s{S_T0}, v{t + 4}')
    a(f'v_xor_b32 v{V2_A + 1}, 64, v{V2_A}')
    a(f'v_add_u32 v{V2_A + 2}, 0x10000, v{V2_A}')
    a(f'v_add_u32 v{V2_A + 3}, 0x10000, v{V2_A + 1}')
    a('s_barrier')
    for r in wd_reads(0):
        a(r)
    for n in range(43):
        a(f's_waitcnt vmcnt({44 - n}) lgkmcnt(0)')
        if (n + 1) % 8 == 0:
            a('s_barrier')
        reads = wd_reads(n + 1) if n < 42 else []
        for e in range(2):
            c = '0' if n == 0 else vr(V2_ACC + 16 * e, 16)
            a(f'v_mfma_f32_32x32x16_bf16 {vr(V2_ACC + 16 * e, 16)}, {vr(V2_WF + 8 * (n & 1) + 4 * e, 4)}, {vr(V2_H + 4 * n, 4)}, {c}')
            for r in reads[2 * e:2 * e + 2]:
                a(r)
    a(f's_lshl_b32 s{S_T0}, s{S_TH}, 1')
    a(f's_add_u32 s{S_T0}, s{S_T0}, s{S_KH}')
    a(f's_lshl_b32 s{S_T0}, s{S_T0}, 12')
    a(f's_xor_b32 s{S_T1}, s{S_T0}, 4096')
    a(f's_add_u32 s{S_T1}, s{S_T1}, {PX}')
    a(f'v_add_u32 v{t + 2}, s{S_T1}, v{t}')
    a(f's_add_u32 s{S_T1}, s{S_T0}, {PX}')
    a(f'v_add_u32 v{t + 3}, s{S_T1}, v{t}')
    a(f's_add_u32 s{S_T1}, s{S_T0}, {YB}')
    a(f'v_add_u32 v{t + 4}, s{S_T1}, v{t}')
    a('s_nop 3')
    for i in range(4):
        a(f'ds_write_b128 v{t + 2}, {vr(V2_ACC + 16 + 4 * i, 4)} offset:{1024 * i}')
    a('s_waitcnt lgkmcnt(0)')
    a('s_barrier')
    po, yy, xx = V2_H, V2_H + 16, V2_H + 32
    for i in range(4):
        a(f'ds_read_b128 {vr(po + 4 * i, 4)}, v{t + 3} offset:{1024 * i}')
    for i in range(4):
        a(f'ds_read_b128 {vr(yy + 4 * i, 4)}, v{t + 4} offset:{1024 * i}')
    a('s_waitcnt vmcnt(0)')
    for i in range(8):
        a(f'v_lshlrev_b32 v{xx + 2 * i}, 16, v{V2_X + i}')
        a(f'v_and_b32 v{xx + 2 * i + 1}, 0xffff0000, v{V2_X + i}')
    a('s_waitcnt lgkmcnt(4)')
    o = V2_ACC
    for v in range(16):
        a(f'v_add_f32 v{o + v}, v{o + v}, v{po + v}')
    for v in range(16):
        a(f'v_mul_f32 v{po + v}, 0xbfb8aa3b, v{o + v}')
    for v in range(16):
        a(f'v_exp_f32 v{po + v}, v{po + v}')
    for v in range(16):
        a(f'v_add_f32 v{po + v}, 1.0, v{po + v}')
    for v in range(16):
        a(f'v_rcp_f32 v{po + v}, v{po + v}')
    a('s_waitcnt lgkmcnt(0)')
    for v in range(16):
        a(f'v_mul_f32 v{o + v}, v{o + v}, v{po + v}')
    for v in range(16):
        a(f'v_fmac_f32 v{xx + v}, v{o + v}, v{yy + v}')
    for i in range(8):
        a(f'v_cvt_pk_bf16_f32 v{o + i}, v{xx + 2 * i}, v{xx + 2 * i + 1}')
    a(f'buffer_store_dwordx4 {vr(o, 4)}, v{t + 1}, s[{SO}:{SO + 3}], 0 offen')
    a(f'buffer_store_dwordx4 {vr(o + 4, 4)}, v{t + 1}, s[{SO}:{SO + 3}], 0 offen offset:16')
    a('s_endpgm')

    a('L_p2_y:')
    vd = 16
    uf = 24
    tw = 56
    ya = 88
    a(f'v_lshrrev_b32 v{t}, 3, v{V_L}')
    a(f'v_bfe_u32 v{t + 1}, v{V_L}, 4, 1')
    a(f'v_lshlrev_b32 v{t + 1}, 2, v{t + 1}')
    a(f'v_and_b32 v{t + 2}, 7, v{V_L}')
    a(f'v_xor_b32 v{t + 1}, v{t + 1}, v{t + 2}')
    a(f'v_lshlrev_b32 v{t}, 10, v{t}')
    a(f'v_lshl_add_u32 v{vd}, v{t + 1}, 4, v{t}')
    for i in range(1, 4):
        a(f'v_add_u32 v{vd + i}, {7168 * i}, v{vd}')
    a(f's_mul_i32 s{S_MW}, s{S_TH}, 81920')
    a(f's_lshl_b32 s{S_T0}, s{S_KH}, 12')
    a(f's_add_u32 s{S_MW}, s{S_MW}, s{S_T0}')
    a(f's_mul_i32 s{S_WO}, s{S_TH}, {688 * 1024}')
    a(f's_lshl_b32 s{S_T0}, s{S_KH}, 15')
    a(f's_add_u32 s{S_WO}, s{S_WO}, s{S_T0}')
    a(f's_lshl_b32 s{S_T0}, s{S_CT}, 7')
    a(f's_add_u32 s{S_WO}, s{S_WO}, s{S_T0}')
    for g in range(10):
        a(f's_add_u32 m0, s{S_MW}, {8192 * g}')
        a(f's_add_u32 s{S_XO}, s{S_WO}, {65536 * g}')
        for i in range(4):
            off = f' offset:{1024 * i}' if i else ''
            a(f'buffer_load_dwordx4 v{vd + i}, s[{SD}:{SD + 3}], s{S_XO} offen{off} lds')
    a(f'v_bfe_u32 v{t}, v{V_L}, 2, 1')
    a(f'v_bfe_u32 v{t + 1}, v{V_L}, 3, 2')
    a(f'v_and_b32 v{t + 2}, 3, v{V_L}')
    a(f'v_lshl_add_u32 v{t + 2}, v{t}, 4, v{t + 2}')
    a(f'v_lshl_add_u32 v{t + 2}, v{t + 1}, 2, v{t + 2}')
    a(f's_lshl_b32 s{S_T0}, s{S_CT}, 6')
    a(f's_lshl_b32 s{S_T1}, s{S_KH}, 5')
    a(f's_add_u32 s{S_T0}, s{S_T0}, s{S_T1}')
    a(f'v_add_u32 v{t + 2}, s{S_T0}, v{t + 2}')
    a(f'v_cmp_eq_u32 vcc, 0, v{t + 2}')
    a(f's_sub_u32 s{S_T1}, 32, s{S_R}')
    a(f's_and_b32 s{S_T1}, s{S_T1}, 31')
    a(f's_cmp_ge_u32 s{S_CT}, 4')
    a(f's_cselect_b32 s{S_T1}, s{S_T1}, s{S_R}')
    a(f's_cselect_b32 s{S_T2}, -1, 0')
    a(f's_and_b32 s{S_T3}, s{S_T2}, 0x80000000')
    a(f's_or_b32 s{S_T3}, s{S_T3}, 0x3a000000')
    a(f'v_xor_b32 v{t + 2}, s{S_T2}, v{t + 2}')
    a(f'v_subrev_u32 v{t + 2}, s{S_T2}, v{t + 2}')
    a(f'v_and_b32 v{t + 2}, 255, v{t + 2}')
    a(f'v_lshrrev_b32 v{t + 1}, 5, v{V_L}')
    a(f'v_lshlrev_b32 v{t + 2}, 4, v{t + 2}')
    a(f'v_lshl_add_u32 v{t + 2}, v{t + 1}, 12, v{t + 2}')
    a(f'v_mov_b32 v{t + 3}, 0x7ff00000')
    a(f's_lshl_b32 s{S_T1}, s{S_T1}, 16')
    a(f's_add_u32 s{S_T1}, s{S_T1}, {U_OFF}')
    a(f'v_cndmask_b32 v{t + 2}, v{t + 2}, v{t + 3}, vcc')
    for n in range(8):
        a(f'buffer_load_dwordx4 {vr(uf + 4 * n, 4)}, v{t + 2}, s[{SWS}:{SWS + 3}], s{S_T1} offen')
        if n < 7:
            a(f's_add_u32 s{S_T1}, s{S_T1}, 8192')
    a('s_waitcnt vmcnt(40)')
    a('s_barrier')
    a(f'v_and_b32 v{t}, 31, v{V_L}')
    a(f's_lshl_b32 s{S_T0}, s{S_TH}, 5')
    a(f's_add_u32 s{S_T0}, s{S_T0}, s{S_R}')
    a(f'v_lshl_add_u32 v{t}, v{t}, 6, s{S_T0}')
    a(f'v_cvt_f32_u32 v{t}, v{t}')
    a(f'v_mul_f32 v{t}, s{S_T3}, v{t}')
    a(f'v_cvt_f32_u32 v{t + 2}, v{t + 1}')
    a(f'v_mul_f32 v{t + 2}, v{t + 2}, v{t}')
    a(f'v_mul_f32 v{t + 3}, 0x42000000, v{t}')
    a(f'v_cmp_gt_u32 vcc, 32, v{V_L}')

    def twid(n):
        an, c, s = t + 4, t + 8, t + 9
        a(f'v_fmamk_f32 v{an}, v{t}, {float_hex(2 * n)}, v{t + 2}')
        a(f'v_add_f32 v{an + 1}, v{an}, v{t + 3}')
        a(f'v_sub_f32 v{an + 2}, v{t + 3}, v{an}')
        if n == 0:
            a(f'v_mul_f32 v{an + 3}, 0.5, v{t + 3}')
            a(f'v_cndmask_b32 v{an + 2}, v{an + 2}, v{an + 3}, vcc')
        a(f'v_add_f32 v{an + 3}, v{an + 2}, v{t + 3}')
        for q in range(4):
            a(f'v_cos_f32 v{c}, v{an + q}')
            a(f'v_sin_f32 v{s}, v{an + q}')
            a('s_nop 0')
            a(f'v_cvt_pk_bf16_f32 v{tw + 4 * n + q}, v{c}, v{s}')
    twid(0)
    twid(1)
    a('s_waitcnt vmcnt(32)')
    a('s_barrier')
    a(f's_mul_i32 s{S_T0}, s{S_TH}, 81920')
    a(f's_mul_i32 s{S_T1}, s{S_KH}, 3072')
    a(f's_add_u32 m0, s{S_T0}, s{S_T1}')
    a(f's_mul_i32 s{S_T0}, s{S_TH}, {688 * 1024}')
    a(f's_mul_i32 s{S_T1}, s{S_KH}, {24 * 1024}')
    a(f's_add_u32 s{S_T0}, s{S_T0}, s{S_T1}')
    a(f's_lshl_b32 s{S_T1}, s{S_CT}, 7')
    a(f's_add_u32 s{S_T0}, s{S_T0}, s{S_T1}')
    a(f's_add_u32 s{S_T0}, s{S_T0}, {640 * 1024}')
    for i in range(3):
        off = f' offset:{1024 * i}' if i else ''
        a(f'buffer_load_dwordx4 v{vd + i}, s[{SD}:{SD + 3}], s{S_T0} offen{off} lds')
    twid(2)
    twid(3)
    a('s_waitcnt vmcnt(27)')
    a('s_barrier')
    twid(4)
    twid(5)
    a('s_waitcnt vmcnt(19)')
    a('s_barrier')
    twid(6)
    twid(7)
    a('s_waitcnt vmcnt(11)')
    a('s_barrier')
    a('s_waitcnt vmcnt(3)')
    for n in range(8):
        c = '0' if n == 0 else vr(ya, 16)
        a(f'v_mfma_f32_32x32x16_bf16 {vr(ya, 16)}, {vr(uf + 4 * n, 4)}, {vr(tw + 4 * n, 4)}, {c}')
    a(f's_lshl_b32 s{S_T0}, s{S_TH}, 1')
    a(f's_add_u32 s{S_T0}, s{S_T0}, s{S_KH}')
    a(f's_lshl_b32 s{S_T0}, s{S_T0}, 12')
    a(f's_add_u32 s{S_T0}, s{S_T0}, {YB}')
    a(f'v_lshl_add_u32 v{t}, v{V_L}, 4, s{S_T0}')
    a('s_waitcnt vmcnt(0)')
    a('s_barrier')
    a('s_nop 4')
    for i in range(4):
        a(f'ds_write_b128 v{t}, {vr(ya + 4 * i, 4)} offset:{1024 * i}')
    a('s_waitcnt lgkmcnt(0)')
    a('s_barrier')
    a('L_p2_end:')
    a('s_endpgm')
    return a.text()


def kd(name, vgpr):
    return f'''.amdhsa_kernel {name}
  .amdhsa_next_free_vgpr {vgpr}
  .amdhsa_next_free_sgpr 64
  .amdhsa_accum_offset {(vgpr + 3) // 4 * 4}
  .amdhsa_group_segment_fixed_size 0
  .amdhsa_kernarg_size 96
  .amdhsa_user_sgpr_count 2
  .amdhsa_user_sgpr_kernarg_segment_ptr 1
  .amdhsa_system_sgpr_workgroup_id_x 1
.end_amdhsa_kernel
'''


def build():
    s = HEADER
    s += '; @launch kernel=p1_kernel grid=(256,1,1) block=(512,1,1) lds=163840\n'
    s += '; @launch kernel=p2_kernel grid=(256,1,1) block=(512,1,1) lds=163840\n'
    s += '.amdgcn_target "amdgcn-amd-amdhsa--gfx950"\n.text\n'
    for name, body in (('p1_kernel', kernel1()), ('p2_kernel', kernel2())):
        s += f'.globl {name}\n.p2align 8\n.type {name},@function\n' + body
    s += '.section .rodata,"a"\n.p2align 6\n' + kd('p1_kernel', 240) + '.p2align 6\n' + kd('p2_kernel', 244)
    return s


if __name__ == '__main__':
    out = sys.argv[1] if len(sys.argv) > 1 else 'k2.s'
    open(out, 'w').write(build())
    print('wrote', out)
```

```python
import os
import re
import struct
import sys

EXP = os.environ.get('EXP', '').split(',')
KNAME = 'recurrent_scan__spectral_fnet__glu_gated_bilinear__prompt'
HEADER = open('cdna_kernels/' + KNAME + '.s.ref').read().split('; Override launch')[0]


def opt(name, default):
    for e in EXP:
        if e.startswith(name + '='):
            return int(e.split('=')[1])
    return default


HST = ' sc1'
HLD = {0: '', 1: ' sc1', 2: ' nt'}[opt('hld', 0)]
FST = {0: '', 1: ' sc1'}[opt('fst', 1)]
FLD = {1: ' sc1', 2: ' nt'}[opt('fld', 1)]
UFS = 7 if 'ufline' in EXP else 2
UFL = 11 if UFS == 7 else 7
NTX = ' nt' if 'ntx' in EXP else ''
NTW = ' nt' if 'ntw' in EXP else ''


class A:
    def __init__(self):
        self.l = []

    def __call__(self, s):
        for line in s.strip('\n').split('\n'):
            self.l.append(line if line.rstrip().endswith(':') else '    ' + line.strip())

    def all(self, seq):
        for s in seq:
            self(s)

    def text(self):
        if opt('bs', -1) >= 0:
            self.l = [x.replace(';@B', ';@T') for x in self.l if x.strip() not in (';@T 4', ';@T 5', ';@T 6')]
        if 'fine' in EXP:
            self.l = [x.replace(';@F', ';@T') for x in self.l if x.strip() not in (';@T 4', ';@T 5', ';@T 6')]
        return '\n'.join(self.l) + '\n'


def vr(b, n):
    return f'v[{b}:{b + n - 1}]'


def fhex(x):
    return hex(struct.unpack('<I', struct.pack('<f', float(x)))[0])


H_OFF = 4
U_OFF = 0x600000
HF_OFF = 0x800000
UF_OFF = 0x840000
X_OFF = 0x860000
SG_OFF = 0x870000
CG_OFF = 0x880000
WS_BYTES = 0x8c0000
SPIN_MAX = 1 << 20

SX, SW, SD, SWS, SO = 8, 12, 16, 20, 24
S_W, S_TQ, S_RB, S_CS, S_S0, S_F0 = 33, 34, 36, 37, 38, 39
S_XO, S_WO, S_MX, S_MW = 40, 41, 42, 43
S_T0, S_T1, S_T2, S_T3 = 44, 45, 46, 47
S_HO, S_TAG, S_SPIN = 48, 49, 50
S_R, S_CT, S_TH, S_KH, S_WH, S_RB2 = 51, 52, 53, 54, 55, 56
S_DM, S_DO, S_ROT, S_HF = 57, 58, 59, 60
S_R2, S_DB, S_HE = 61, 3, 32
S_WP = 35
S_H0 = 28

XR, WR, FM = 0, 49152, 122880
CS, RS, FL = 155648, 161792, 163328
FL_S7, FL_H, FL_CS, FL_CO, FL_R34, FL_UW, FL_GO, FL_UG, FL_R4, FL_ST = (FL + o for o in (0, 32, 48, 64, 80, 96, 112, 128, 144, 160))
UB = 16384
YB, PX = FM, FM + 16384
NPRE = 15
DP = [8, 9, 10, 11, 24, 25, 26, 27, 28, 29,
      0, 1, 2, 3, 12, 13, 14, 15, 16, 17,
      6, 7, 18, 19, 20, 21, 22, 23]
DP += DP[:15]

V_L, V_T, V_ONE, V_FLA = 0, 16, 245, 246

C_XA, C_WA = 1, 5
C_CA, C_ACC, C_XF, C_WF, C_SG = 24, 40, 136, 168, 200
HPF, HRING = opt('hpf', 8), 12
XRES = 34
G_A, G_T, G_ACC, G_WF, G_X, G_PRE, G_H, G_CHK = 1, 8, 16, 48, 64, 72, 192, 248
AHEAD = opt('ahead', 2)
H_XD, H_WD, H_XA = 1, 5, 8
H_CM, H_SM, H_DA, H_TW, H_FF, H_C, H_XF, H_SG, H_DD = 24, 32, 40, 56, 88, 104, 112, 240, 244


def srd(a, s, nbytes):
    a(f's_and_b32 s{s + 1}, s{s + 1}, 0xffff')
    a(f's_mov_b32 s{s + 2}, {nbytes}')
    a(f's_mov_b32 s{s + 3}, 0x20000')


def residues(a, rb, ra, rbb):
    a(f's_mov_b32 s{ra}, s{rb}')
    a(f's_sub_u32 s{rbb}, 32, s{rb}')
    a(f's_cmp_eq_u32 s{rb}, 0')
    a(f's_cselect_b32 s{rbb}, 16, s{rbb}')


def phase2_tile(a):
    a(f's_and_b32 s{S_RB2}, s2, 7')
    a(f's_lshl_b32 s{S_RB2}, s{S_RB2}, 1')
    a(f's_lshr_b32 s{S_T0}, s2, 7')
    a(f's_add_u32 s{S_RB2}, s{S_RB2}, s{S_T0}')
    a(f's_bfe_u32 s{S_WH}, s2, 0x10006')
    a(f's_bfe_u32 s{S_CT}, s2, 0x30003')
    residues(a, S_RB2, S_T0, S_T1)
    a(f's_cmp_eq_u32 s{S_WH}, 0')
    a(f's_cselect_b32 s{S_R}, s{S_T0}, s{S_T1}')
    a(f'v_mov_b32 v{V_ONE}, 1')
    a(f's_lshl_b32 s{S_T0}, s{S_TQ}, 2')
    a(f's_add_u32 s{S_T0}, s{S_T0}, {FL}')
    a(f'v_mov_b32 v{V_FLA}, s{S_T0}')


def wd_setup(a):
    t = V_T
    a(f'v_lshrrev_b32 v{t}, 3, v{V_L}')
    a(f'v_bfe_u32 v{t + 1}, v{V_L}, 4, 1')
    a(f'v_lshlrev_b32 v{t + 1}, 2, v{t + 1}')
    a(f'v_and_b32 v{t + 2}, 7, v{V_L}')
    a(f'v_xor_b32 v{t + 1}, v{t + 1}, v{t + 2}')
    a(f'v_lshlrev_b32 v{t}, 10, v{t}')
    a(f'v_lshl_add_u32 v{H_DD}, v{t + 1}, 4, v{t}')
    a(f's_lshl_b32 s{S_DM}, s{S_KH}, 11')
    a(f's_lshl_b32 s{S_T0}, s{S_TH}, 10')
    a(f's_add_u32 s{S_DM}, s{S_DM}, s{S_T0}')
    a(f's_mul_i32 s{S_DO}, s{S_KH}, {688 * 1024}')
    a(f's_lshl_b32 s{S_T0}, s{S_TH}, 13')
    a(f's_add_u32 s{S_DO}, s{S_DO}, s{S_T0}')
    a(f's_lshl_b32 s{S_T0}, s{S_CT}, 7')
    a(f's_add_u32 s{S_DO}, s{S_DO}, s{S_T0}')
    a(f's_mul_i32 s{S_T0}, s{S_CT}, {opt("rot2", 5)}')
    a(f's_sub_u32 s{S_R2}, 43, s{S_T0}')
    a(f's_lshl_b32 s{S_T0}, s{S_T0}, 14')
    a(f's_add_u32 s{S_DO}, s{S_DO}, s{S_T0}')
    a(f's_sub_u32 s{S_DB}, s{S_DO}, {43 * 16384}')


def lds_spin(a, name, addr, nwords, tmp, nap=0):
    a(f'v_mov_b32 v{tmp + 8}, {addr}')
    a(f's_mov_b32 s{S_SPIN}, {SPIN_MAX}')
    if nap:
        a(f's_branch L_{name}_first')
    a(f'L_{name}:')
    if nap:
        a(f's_sleep {nap}')
        a(f'L_{name}_first:')
    a(f'ds_read_b128 {vr(tmp, 4)}, v{tmp + 8}')
    if nwords == 8:
        a(f'ds_read_b128 {vr(tmp + 4, 4)}, v{tmp + 8} offset:16')
    a(f's_sub_u32 s{S_SPIN}, s{S_SPIN}, 1')
    a(f's_cbranch_scc1 L_{name}_out')
    a('s_waitcnt lgkmcnt(0)')
    a(f'v_and_b32 v{tmp}, v{tmp}, v{tmp + 1}')
    a(f'v_and_b32 v{tmp + 2}, v{tmp + 2}, v{tmp + 3}')
    if nwords == 8:
        a(f'v_and_b32 v{tmp + 4}, v{tmp + 4}, v{tmp + 5}')
        a(f'v_and_b32 v{tmp + 6}, v{tmp + 6}, v{tmp + 7}')
        a(f'v_and_b32 v{tmp}, v{tmp}, v{tmp + 4}')
        a(f'v_and_b32 v{tmp + 2}, v{tmp + 2}, v{tmp + 6}')
    a(f'v_and_b32 v{tmp}, v{tmp}, v{tmp + 2}')
    a(f'v_cmp_eq_u32 s[62:63], 0, v{tmp}')
    a('s_cmp_lg_u64 s[62:63], 0')
    a(f's_cbranch_scc1 L_{name}')
    a(f'L_{name}_out:')
    a('s_waitcnt lgkmcnt(0)')


def signal(a, addr):
    a(f'ds_write_b32 v{V_FLA}, v{V_ONE} offset:{addr - FL}')


def flag_store(a, soff, tmp, flav=' sc1'):
    a(f'v_mov_b32 v{tmp}, s{S_TAG}')
    a(f'v_mov_b32 v{tmp + 1}, 0')
    a('s_mov_b64 exec, 1')
    a(f'buffer_store_dword v{tmp}, v{tmp + 1}, s[{SWS}:{SWS + 3}], s{soff} offen{flav}')
    a('s_mov_b64 exec, -1')


def stat_check(a, name, regs, addr, soff, step=512):
    a(f's_mov_b32 s{S_SPIN}, {SPIN_MAX}')
    a(f'L_{name}:')
    for i, r in enumerate(regs):
        a(f'v_cmp_ne_u32 s[62:63], s{S_TAG}, v{r + 3}')
        a('s_cmp_lg_u64 s[62:63], 0')
        a(f's_cbranch_scc1 L_{name}_again')
    a(f's_branch L_{name}_out')
    a(f'L_{name}_again:')
    for i, r in enumerate(regs):
        off = f' offset:{step * i}' if i else ''
        a(f'buffer_load_dwordx4 {vr(r, 4)}, v{addr}, s[{SWS}:{SWS + 3}], s{soff} offen{off} sc1')
    a(f's_sub_u32 s{S_SPIN}, s{S_SPIN}, 1')
    a('s_waitcnt vmcnt(0)')
    a(f's_cbranch_scc0 L_{name}')
    a(f'L_{name}_out:')


def c_reads(n):
    s, k = n >> 2, n & 3
    xs = [f'ds_read_b128 {vr(C_XF + 8 * (n & 1) + 4 * ts, 4)}, v{C_XA + k} offset:{(s % 3) * 16384 + 4096 * ts}' for ts in range(2)]
    ws = []
    for bi in range(3):
        ws.append([f'ds_read_b64_tr_b16 {vr(C_WF + 12 * (n & 1) + 4 * bi + 2 * u, 2)}, v{C_WA + bi} '
                   f'offset:{(s % 3) * 24576 + (16 * k + 4 * u) * 192}' for u in range(2)])
    return xs, ws


def compute_prologue(a):
    t = V_T
    a(f's_lshr_b32 s{S_T0}, s{S_CS}, 2')
    residues(a, S_RB, S_T1, S_T2)
    a(f's_cmp_ge_u32 s{S_T0}, 2')
    a(f's_cselect_b32 s{S_T1}, s{S_T2}, s{S_T1}')
    a(f's_and_b32 s{S_T2}, s{S_T0}, 1')
    a(f's_lshl_b32 s{S_T2}, s{S_T2}, 5')
    a(f's_add_u32 s{S_T1}, s{S_T1}, s{S_T2}')
    a(f's_lshl_b32 s{S_T1}, s{S_T1}, 10')
    a(f's_and_b32 s{S_T2}, s{S_CS}, 3')
    a(f's_lshl_b32 s{S_T2}, s{S_T2}, 2')
    a(f's_add_u32 s{S_T2}, s{S_T2}, s{S_W}')
    a(f's_lshl_b32 s{S_T2}, s{S_T2}, 1')
    a(f's_lshl_b32 s{S_T3}, s{S_T2}, 16')
    a(f's_add_u32 s{S_T1}, s{S_T1}, s{S_T3}')
    a(f'v_lshrrev_b32 v{t + 1}, 5, v{V_L}')
    a(f'v_and_b32 v{t}, 31, v{V_L}')
    a(f'v_lshlrev_b32 v{t + 2}, 5, v{t}')
    a(f'v_lshl_add_u32 v{t + 2}, v{t + 1}, 16, v{t + 2}')
    a('s_waitcnt lgkmcnt(0)')
    a(f's_add_u32 s62, s{SWS}, {X_OFF}')
    a(f's_addc_u32 s63, s{SWS + 1}, 0')
    a(f's_load_dword s{S_TAG}, s[62:63], 0')
    srd(a, SX, 2097152)
    a(';@T 1')
    sr = C_ACC + 32
    a(f'buffer_load_dwordx4 {vr(sr, 4)}, v{t + 2}, s[{SX}:{SX + 3}], s{S_T1} offen')
    a(f'buffer_load_dwordx4 {vr(sr + 4, 4)}, v{t + 2}, s[{SX}:{SX + 3}], s{S_T1} offen offset:16')
    a(f's_lshl_b32 s{S_T1}, s{S_RB}, 2')
    a(f's_add_u32 s{S_T1}, s{S_T1}, s{S_T0}')
    a(f's_lshl_b32 s{S_T1}, s{S_T1}, 5')
    a(f's_add_u32 s{S_T1}, s{S_T1}, s{S_T2}')
    a(f's_lshl_b32 s{S_T1}, s{S_T1}, 4')
    a(f's_add_u32 s{S_HO}, s{S_T1}, {SG_OFF}')
    if 'notouch' not in EXP:
        a(f's_mov_b32 s3, {1376 * 1024}')
        a(f's_cmp_ge_u32 s{S_W}, 2')
        a(f's_cselect_b32 s{SW}, s{SX}, s{SD}')
        a(f's_cselect_b32 s{SW + 1}, s{SX + 1}, s{SD + 1}')
        a(f's_cselect_b32 s{S_T0}, 32, 22')
        a(f's_cselect_b32 s{SW + 2}, 2097152, s3')
        a(f's_and_b32 s{SW + 1}, s{SW + 1}, 0xffff')
        a(f's_mov_b32 s{SW + 3}, 0x20000')
        a(f's_lshl_b32 s{S_WO}, s2, 1')
        a(f's_add_u32 s{S_WO}, s{S_WO}, s{S_TH}')
        a(f's_mul_i32 s{S_WO}, s{S_WO}, s{S_T0}')
        a(f's_lshl_b32 s{S_WO}, s{S_WO}, 7')
        a(f'v_lshlrev_b32 v{t + 2}, 7, v{V_L}')
        a(f'v_mov_b32 v{t + 3}, 0x7ff00000')
        a(f'v_cmp_gt_u32 vcc, s{S_T0}, v{V_L}')
        a('s_nop 1')
        a(f'v_cndmask_b32 v13, v{t + 3}, v{t + 2}, vcc')
    srd(a, SWS, WS_BYTES)
    srd(a, SO, 2097152)
    phase2_tile(a)
    srd(a, SD, 1376 * 1024)
    a(';@ARMED')
    a(f'v_bfe_u32 v{t + 2}, v{V_L}, 1, 3')
    a(f'v_xor_b32 v{t + 2}, v{t + 2}, v{t + 1}')
    a(f'v_lshlrev_b32 v{t}, 7, v{t}')
    a(f'v_lshl_add_u32 v{t}, v{t + 2}, 4, v{t}')
    a(f's_lshl_b32 s{S_T0}, s{S_TH}, 13')
    a(f'v_add_u32 v{C_XA}, s{S_T0}, v{t}')
    for k in range(1, 4):
        a(f'v_xor_b32 v{C_XA + k}, {32 * k}, v{C_XA}')
    a(f'v_bfe_u32 v{t}, v{V_L}, 4, 1')
    a(f'v_bfe_u32 v{t + 2}, v{V_L}, 2, 2')
    a(f'v_lshl_add_u32 v{t + 2}, v{t + 1}, 3, v{t + 2}')
    a(f'v_mul_u32_u24 v{t + 2}, 192, v{t + 2}')
    a(f'v_mul_u32_u24 v{t + 3}, {12288 + 32}, v{t}')
    a(f'v_add_u32 v{t + 2}, v{t + 2}, v{t + 3}')
    a(f'v_and_b32 v{t + 3}, 1, v{V_L}')
    a(f'v_lshl_add_u32 v{t + 2}, v{t + 3}, 4, v{t + 2}')
    a(f'v_bfe_u32 v{t + 3}, v{V_L}, 1, 1')
    a(f'v_lshl_add_u32 v{t + 2}, v{t + 3}, 3, v{t + 2}')
    a(f's_lshl_b32 s{S_T2}, s{S_RB}, 2')
    a(f's_lshl_b32 s{S_T1}, s{S_TH}, 1')
    a(f's_add_u32 s{S_T2}, s{S_T2}, s{S_T1}')
    a(f's_mul_i32 s{S_T2}, s{S_T2}, 86')
    a(f's_add_u32 s{S_T2}, s{S_T2}, s{S_F0}')
    a(f's_add_u32 s{S_T2}, s{S_T2}, {H_OFF}')
    for bi in range(3):
        a(f's_cmp_eq_u32 s{S_KH}, 0')
        a(f's_cselect_b32 s{S_T0}, {(1, 2, 0)[bi]}, {3 + bi}')
        a(f's_add_u32 s{S_H0 + bi}, s{S_T2}, s{S_T0}')
        a(f's_lshl_b32 s{S_H0 + bi}, s{S_H0 + bi}, 10')
        a(f's_and_b32 s{S_T1}, s{S_T0}, 1')
        a(f's_lshl_b32 s{S_T1}, s{S_T1}, 5')
        a(f'v_xor_b32 v{t + 3}, s{S_T1}, v{t + 2}')
        a(f's_lshr_b32 s{S_T0}, s{S_T0}, 1')
        a(f's_lshl_b32 s{S_T0}, s{S_T0}, 6')
        a(f's_add_u32 s{S_T0}, s{S_T0}, {WR}')
        a(f'v_add_u32 v{C_WA + bi}, s{S_T0}, v{t + 3}')
    a(f'v_mov_b32 v{t + 3}, 0')
    a(f'v_lshlrev_b32 v{t + 2}, 2, v{V_L}')
    a(f'v_add_u32 v{t + 2}, {FL}, v{t + 2}')
    a(f'ds_write_b32 v{t + 2}, v{t + 3}')
    a(f'v_and_b32 v{t + 2}, 15, v{V_L}')
    a(f's_lshl_b32 s{S_T0}, s{S_CS}, 4')
    a(f'v_add_u32 v{t + 2}, s{S_T0}, v{t + 2}')
    a(f'v_cmp_eq_u32 vcc, 0, v{t + 2}')
    a(f'v_mov_b32 v{t + 3}, 0x100')
    a(f'v_cvt_f32_u32 v{t}, v{t}')
    a(f'v_cndmask_b32 v{t + 2}, v{t + 2}, v{t + 3}, vcc')
    a(f'v_cvt_f32_u32 v{t + 2}, v{t + 2}')
    a(f'v_mul_f32 v{t + 2}, 0x3b000000, v{t + 2}')
    a(f'v_mul_f32 v{t}, 0x3e800000, v{t}')
    a(f's_lshl_b32 s{S_T0}, s{S_W}, 13')
    a(f's_add_u32 s{S_T0}, s{S_T0}, {FM}')
    a(f'v_lshl_add_u32 v{t + 5}, v{V_L}, 4, s{S_T0}')
    g = C_ACC
    for st in range(2):
        a(f's_lshl_b32 s{S_T0}, s{S_W}, 1')
        a(f's_add_u32 s{S_T0}, s{S_T0}, s{S_ROT}')
        a(f's_add_u32 s{S_T0}, s{S_T0}, {st}')
        a(f's_and_b32 s{S_T0}, s{S_T0}, 7')
        a(f's_lshl_b32 s{S_T0}, s{S_T0}, 6')
        a(f'v_lshl_add_u32 v{t + 6}, v{t + 1}, 3, s{S_T0}')
        a(f'v_cvt_f32_u32 v{t + 6}, v{t + 6}')
        a(f'v_fma_f32 v{t + 6}, v{t + 6}, v{t + 2}, v{t}')
        for n in range(4):
            for q in range(8):
                if q == 0 and n == 0:
                    a(f'v_cos_f32 v{g}, v{t + 6}')
                else:
                    a(f'v_fmamk_f32 v{t + 3 + (q & 1)}, v{t + 2}, {fhex(16 * n + q)}, v{t + 6}')
                    a(f'v_cos_f32 v{g + q}, v{t + 3 + (q & 1)}')
            a('s_nop 0')
            for i in range(4):
                a(f'v_cvt_pk_bf16_f32 v{g + 8 + 4 * (n & 1) + i}, v{g + 2 * i}, v{g + 2 * i + 1}')
            a(f'ds_write_b128 v{t + 5}, {vr(g + 8 + 4 * (n & 1), 4)} offset:{4096 * st + 1024 * n}')
            if 4 * st + n == opt('tpos', 3) and 'notouch' not in EXP:
                a(f'buffer_load_dword v247, v13, s[{SW}:{SW + 3}], s{S_WO} offen')
        if st == 0:
            s1, s2, s1b, s2b = t + 3, t + 4, C_SG, C_SG + 1
            a(f's_waitcnt vmcnt({0 if "notouch" in EXP or opt("tpos", 3) > 3 else 1})')
            for i in range(8):
                lo, hi = sr + 8, sr + 9
                a(f'v_lshlrev_b32 v{lo}, 16, v{sr + i}')
                a(f'v_and_b32 v{hi}, 0xffff0000, v{sr + i}')
                if i == 0:
                    a(f'v_mov_b32 v{s1}, v{lo}')
                    a(f'v_mov_b32 v{s1b}, v{hi}')
                    a(f'v_mul_f32 v{s2}, v{lo}, v{lo}')
                    a(f'v_mul_f32 v{s2b}, v{hi}, v{hi}')
                else:
                    a(f'v_add_f32 v{s1}, v{s1}, v{lo}')
                    a(f'v_add_f32 v{s1b}, v{s1b}, v{hi}')
                    a(f'v_fmac_f32 v{s2}, v{lo}, v{lo}')
                    a(f'v_fmac_f32 v{s2b}, v{hi}, v{hi}')
            a(f'v_add_f32 v{s1}, v{s1}, v{s1b}')
            a(f'v_add_f32 v{s2}, v{s2}, v{s2b}')
            for dpp in ('row_shr:1', 'row_shr:2', 'row_shr:4', 'row_shr:8', 'row_bcast:15 row_mask:0xa'):
                a('s_nop 0')
                a(f'v_add_f32_dpp v{s1}, v{s1}, v{s1} {dpp}')
                a(f'v_add_f32_dpp v{s2}, v{s2}, v{s2} {dpp}')
            q = C_SG
            a(f'v_mul_f32 v{q}, 0xbb000000, v{s1}')
            a(f'v_mul_f32 v{s2}, 0x3b000000, v{s2}')
            a(f'v_fma_f32 v{s2}, -v{q}, v{q}, v{s2}')
            a(f'v_max_f32 v{s2}, 0, v{s2}')
            a(f'v_add_f32 v{s2}, 0x3727c5ac, v{s2}')
            a(f'v_rcp_f32 v{q + 1}, v{s2}')
            a(f'v_rsq_f32 v{q + 2}, v{s2}')
            a(f'v_lshlrev_b32 v{s1}, 4, v{t + 1}')
            a('s_waitcnt lgkmcnt(0)')
            a(f's_add_u32 s{S_TAG}, s{S_TAG}, 0x9e3779b9')
            a('s_mov_b32 exec_lo, 0x80000000')
            a('s_mov_b32 exec_hi, 0x80000000')
            a(f'v_mov_b32 v{q + 3}, s{S_TAG}')
            a(f'buffer_store_dwordx4 {vr(q, 4)}, v{s1}, s[{SWS}:{SWS + 3}], s{S_HO} offen sc1')
            a('s_mov_b64 exec, -1')
    a(f's_lshl_b32 s{S_HF}, s{S_RB}, 1')
    a(f's_add_u32 s{S_HF}, s{S_HF}, s{S_TH}')
    a(f's_lshl_b32 s{S_HF}, s{S_HF}, 4')
    a(f's_add_u32 s{S_HF}, s{S_HF}, s{S_CS}')
    a(f's_lshl_b32 s{S_HF}, s{S_HF}, 1')
    a(f's_add_u32 s{S_HF}, s{S_HF}, s{S_KH}')
    a(f's_lshl_b32 s{S_HF}, s{S_HF}, 7')
    a(f's_add_u32 s{S_HF}, s{S_HF}, {HF_OFF}')
    wd_setup(a)
    a(f's_lshl_b32 s{S_HO}, s{S_RB}, 2')
    a(f's_lshl_b32 s{S_T0}, s{S_TH}, 1')
    a(f's_add_u32 s{S_HO}, s{S_HO}, s{S_T0}')
    a(f's_lshl_b32 s{S_HO}, s{S_HO}, 9')
    a(f's_add_u32 s{S_HO}, s{S_HO}, {SG_OFF}')
    a(f'v_and_b32 v12, 31, v{V_L}')
    a('v_lshlrev_b32 v12, 4, v12')
    a(f's_sub_u32 s{S_T0}, 1, s{S_KH}')
    a(f's_lshl_b32 s{S_T0}, 0x1249, s{S_T0}')
    a(f's_lshr_b32 s{S_T0}, s{S_T0}, s{S_CS}')
    a(f's_and_b32 s{S_T0}, s{S_T0}, 1')
    a(f's_mov_b32 s{S_T1}, 0')
    a(f's_mov_b64 vcc, s[{S_T0}:{S_T1}]')
    a(';@T 2')
    a('s_waitcnt lgkmcnt(0)')
    a('s_barrier')
    a(';@T 3')


def compute_loop(a):
    t = V_T
    xs, ws = c_reads(0)
    a.all(ws[2] + xs + ws[0] + ws[1])
    slot7 = 7 % 3

    def x7(k, ts):
        return C_XF + 8 * ((k + 2) & 3) + 4 * ts

    def w7reads(bi):
        return [f'ds_read_b64_tr_b16 {vr(C_WF + 16 * (bi & 1) + 4 * k + 2 * u, 2)}, v{C_WA + bi} '
                f'offset:{slot7 * 24576 + (16 * k + 4 * u) * 192}' for k in range(4) for u in range(2)]

    def mm(n, bi, ts):
        acc = C_ACC + 32 * bi + 16 * ts
        c = '0' if n == 0 else vr(acc, 16)
        a(f'v_mfma_f32_32x32x16_bf16 {vr(acc, 16)}, {vr(C_WF + 12 * (n & 1) + 4 * bi, 4)}, {vr(C_XF + 8 * (n & 1) + 4 * ts, 4)}, {c}')
    for n in range(28):
        s, k = n >> 2, n & 3
        if n < 27:
            xs, ws = c_reads(n + 1)
        else:
            xr = [f'ds_read_b128 {vr(x7(kk, ts), 4)}, v{C_XA + kk} offset:{slot7 * 16384 + 4096 * ts}' for kk in range(4) for ts in range(2)]
            gt = [f'ds_read_b128 {vr(C_CA + 4 * i, 4)}, v{t + 1} offset:{1024 * i}' for i in range(2)]
        a('s_waitcnt lgkmcnt(4)')
        a(f's_cbranch_vccnz L_opt_{n}')
        mm(n, 2, 0)
        if k < 3:
            a.all(ws[2])
        mm(n, 2, 1)
        a(f'L_opt_{n}:')
        if k < 3:
            a('s_waitcnt lgkmcnt(2)')
            fill = [xs + ws[0][:1], ws[0][1:] + ws[1], [], []]
        else:
            a('s_waitcnt lgkmcnt(0)')
            if s == opt('bs', -1):
                a(';@B 5')
            a('s_barrier')
            if s in (0, 3, 6):
                a(f';@T {4 + s // 3}')
            if s == opt('bs', -1):
                a(';@B 6')
            if s == opt('bs', -1) - 1:
                a(';@B 4')
            fill = [ws[2] + xs[:1], xs[1:] + ws[0], ws[1], []] if n < 27 else [gt + xr[0:1], xr[1:4], xr[4:6], []]
        for i in range(4):
            if i == 2 and k < 3:
                a('s_waitcnt lgkmcnt(6)')
            mm(n, i >> 1, i & 1)
            a.all(fill[i])
        if n == 4 * opt('gs', 4) + 1:
            for ts in range(2):
                off = ' offset:512' if ts else ''
                a(f'buffer_load_dwordx4 {vr(C_SG + 4 * ts, 4)}, v12, s[{SWS}:{SWS + 3}], s{S_HO} offen{off} sc1')
            a(f's_lshl_b32 s{S_T0}, s{S_KH}, 9')
            a(f's_add_u32 s{S_T0}, s{S_T0}, {CS}')
            a(f'v_lshrrev_b32 v{t + 1}, 5, v{V_L}')
            a(f'v_lshl_add_u32 v{t + 1}, v{t + 1}, 11, v12')
            a(f'v_add_u32 v{t + 1}, s{S_T0}, v{t + 1}')
            a(f'v_lshlrev_b32 v{t + 2}, 4, v{V_L}')
            a(f'v_add_u32 v{t + 3}, {86 * 1024}, v{t + 2}')
        if n == 25:
            a('s_waitcnt vmcnt(0)')
            stat_check(a, 'cstat', [C_SG, C_SG + 4], 12, S_HO)
    a.all(xr[6:8])
    a('s_waitcnt lgkmcnt(6)')
    a.all(w7reads(0))
    for bi in range(3):
        a(f'v_add_f32 v{C_CA + bi}, v{C_CA + bi}, v{C_CA + 4 + bi}')
    a('s_nop 1')
    w1 = w7reads(1)
    for i in range(6):
        bi, ts = divmod(i, 2)
        acc = C_ACC + 16 * i
        a(f'v_mfma_f32_32x32x2_f32 {vr(acc, 16)}, v{C_CA + bi}, v{C_SG + 4 * ts}, {vr(acc, 16)}')
        if i == 1:
            a('s_waitcnt lgkmcnt(6)')
        if i >= 2:
            a.all(w1[2 * (i - 2):2 * (i - 2) + 2])

    def finish(i):
        bi, ts = divmod(i, 2)
        acc = C_ACC + 16 * i
        ops = [f'v_mul_f32 v{acc + v}, v{C_SG + 4 * ts + 1}, v{acc + v}' for v in range(8)]
        ops += [f'v_mul_f32 v{acc + v}, v{acc + v}, v{acc + 8 + v}' for v in range(8)]
        ops += [f'v_cvt_pk_bf16_f32 v{acc + 8 + j}, v{acc + 2 * j}, v{acc + 2 * j + 1}' for j in range(4)]
        ops.append(f'buffer_store_dwordx4 {vr(acc + 8, 4)}, v{t + 2 + ts}, s[{SWS}:{SWS + 3}], s{S_H0 + bi} offen{HST}')
        return ops

    def slot_mfmas(bi, fillers, first=0):
        per = -(-len(fillers) // (8 - first)) if fillers else 0
        j = 0
        for ts in range(2):
            for k in range(4):
                acc = C_ACC + 32 * bi + 16 * ts
                a(f'v_mfma_f32_32x32x16_bf16 {vr(acc, 16)}, {vr(C_WF + 16 * (bi & 1) + 4 * k, 4)}, {vr(x7(k, ts), 4)}, {vr(acc, 16)}')
                if j >= first:
                    a.all(fillers[per * (j - first):per * (j - first + 1)])
                j += 1
    a('s_waitcnt lgkmcnt(8)')
    slot_mfmas(0, [])
    a('s_waitcnt lgkmcnt(0)')
    a('s_cbranch_vccnz L_two')
    slot_mfmas(1, w7reads(2) + finish(0) + finish(1))
    a('s_waitcnt lgkmcnt(0)')
    signal(a, FL_S7)
    a(';@T 7')
    slot_mfmas(2, ['s_nop 5'] + finish(2) + finish(3))
    a.all(finish(4))
    a.all(finish(5))
    a('s_branch L_hdone')
    a('L_two:')
    signal(a, FL_S7)
    slot_mfmas(1, ['s_nop 6'] + finish(0) + finish(1))
    a(';@T 7')
    a.all(finish(2))
    a.all(finish(3))
    a('L_hdone:')
    signal(a, FL_ST)
    a(';@T 8')


def wd_reads(n, dst):
    rng, off0 = divmod(DP[n] * 4096, 65536)
    return [f'ds_read_b64_tr_b16 {vr(dst + 4 * e + 2 * u, 2)}, v{G_A + 2 * rng + e} offset:{off0 + u * 512}'
            for e in range(2) for u in range(2)]


def wfrag(n):
    return G_PRE + 8 * (n if n < NPRE else (n - NPRE) % 4)


def gemm2(a):
    t = G_T
    a(f'v_lshrrev_b32 v{t + 2}, 5, v{V_L}')
    a(f'v_bfe_u32 v{t + 3}, v{V_L}, 2, 2')
    a(f'v_lshl_add_u32 v{t + 4}, v{t + 2}, 3, v{t + 3}')
    a(f'v_lshlrev_b32 v{t + 4}, 7, v{t + 4}')
    a(f'v_lshrrev_b32 v{t + 3}, 1, v{t + 3}')
    a(f'v_xor_b32 v{t + 3}, s{S_KH}, v{t + 3}')
    a(f'v_lshl_add_u32 v{t + 4}, v{t + 3}, 6, v{t + 4}')
    a(f'v_and_b32 v{t + 3}, 1, v{V_L}')
    a(f'v_lshl_add_u32 v{t + 4}, v{t + 3}, 5, v{t + 4}')
    a(f'v_bfe_u32 v{t + 3}, v{V_L}, 4, 1')
    a(f'v_lshl_add_u32 v{t + 4}, v{t + 3}, 4, v{t + 4}')
    a(f'v_bfe_u32 v{t + 3}, v{V_L}, 1, 1')
    a(f'v_lshl_add_u32 v{t + 4}, v{t + 3}, 3, v{t + 4}')
    a(f's_lshl_b32 s{S_T0}, s{S_KH}, 11')
    a(f'v_add_u32 v{G_A}, s{S_T0}, v{t + 4}')
    a(f'v_xor_b32 v{G_A + 1}, 64, v{G_A}')
    a(f'v_add_u32 v{G_A + 2}, 65536, v{G_A}')
    a(f'v_add_u32 v{G_A + 3}, 65536, v{G_A + 1}')
    a(f'v_and_b32 v{t + 1}, 31, v{V_L}')
    a(f'v_lshlrev_b32 v{t + 1}, 16, v{t + 1}')
    a(f'v_lshl_add_u32 v{t + 1}, v{t + 2}, 5, v{t + 1}')
    a(f's_lshl_b32 s{S_T0}, s{S_TH}, 5')
    a(f's_add_u32 s{S_T0}, s{S_T0}, s{S_R}')
    a(f's_lshl_b32 s{S_T0}, s{S_T0}, 10')
    a(f's_lshl_b32 s{S_T1}, s{S_CT}, 7')
    a(f's_add_u32 s{S_T0}, s{S_T0}, s{S_T1}')
    a(f's_lshl_b32 s{S_T1}, s{S_KH}, 6')
    a(f's_add_u32 s{S_T0}, s{S_T0}, s{S_T1}')
    a(f'v_add_u32 v{t + 1}, s{S_T0}, v{t + 1}')
    a(f's_lshl_b32 s{S_HO}, s{S_RB2}, 2')
    a(f's_lshl_b32 s{S_T0}, s{S_WH}, 1')
    a(f's_add_u32 s{S_HO}, s{S_HO}, s{S_T0}')
    a(f's_add_u32 s{S_HO}, s{S_HO}, s{S_TH}')
    a(f's_mul_i32 s{S_HO}, s{S_HO}, 86')
    a(f's_mul_i32 s{S_T0}, s{S_KH}, 43')
    a(f's_add_u32 s{S_HO}, s{S_HO}, s{S_T0}')
    a(f's_add_u32 s{S_HO}, s{S_HO}, {43 + H_OFF}')
    a(f's_sub_u32 s{S_HO}, s{S_HO}, s{S_R2}')
    a(f's_lshl_b32 s{S_HO}, s{S_HO}, 10')
    a(f's_sub_u32 s{S_HE}, s{S_HO}, {43 * 1024}')
    a(f'v_lshlrev_b32 v{t}, 4, v{V_L}')
    a(f's_lshl_b32 s{S_T0}, s{S_KH}, 4')
    a(f'v_add_u32 v{t + 2}, s{S_T0}, v{V_L}')
    a(f'v_min_u32 v{t + 2}, 31, v{t + 2}')
    a(f'v_lshlrev_b32 v{t + 2}, 7, v{t + 2}')
    a(f's_lshl_b32 s{S_T2}, s{S_RB2}, 1')
    a(f's_add_u32 s{S_T2}, s{S_T2}, s{S_WH}')
    a(f's_lshl_b32 s{S_T2}, s{S_T2}, 12')
    a(f's_add_u32 s{S_T2}, s{S_T2}, {HF_OFF}')
    lds_spin(a, 'h', FL_H, 4, G_H, 1 * opt('nap', 1))
    a(';@F 4')
    NP1, K1 = opt('np1', 15), opt('k1', 15)
    for n in range(NPRE):
        if n == NP1:
            a('s_waitcnt vmcnt(0)')
            flag_store(a, S_HF, G_H, FST)
            a(';@T 9')
        a.all(wd_reads(n, wfrag(n)))
        if n & 1:
            a('s_waitcnt lgkmcnt(4)')
    a('s_waitcnt lgkmcnt(0)')
    signal(a, FL_CO)
    lds_spin(a, 'cco', FL_CO, 4, G_H)
    if NP1 == NPRE:
        a('s_waitcnt vmcnt(0)')
        flag_store(a, S_HF, G_H, FST)
        a(';@T 9')
    a(';@F 5')
    late = list(range(28, 43)) if 'nolate' not in EXP else []
    for n in range(min(K1, len(late))):
        a.all(wd_piece(late.pop(0)))
    a(f's_mov_b32 s{S_SPIN}, {SPIN_MAX}')
    a('s_mov_b64 exec, 0x1ffff')
    a('L_hpoll:')
    a(f'buffer_load_dword v{t + 3}, v{t + 2}, s[{SWS}:{SWS + 3}], s{S_T2} offen{FLD}')
    a(f's_sub_u32 s{S_SPIN}, s{S_SPIN}, 1')
    a('s_cbranch_scc1 L_hpoll_out')
    a('s_waitcnt vmcnt(0)')
    a(f'v_cmp_ne_u32 vcc, s{S_TAG}, v{t + 3}')
    a('s_cbranch_vccnz L_hpoll')
    a('L_hpoll_out:')
    a('s_mov_b64 exec, -1')
    a('s_waitcnt vmcnt(0)')
    a(';@T 10')

    def hload(n):
        if n and n % 4 == 0:
            a(f's_add_u32 s{S_HO}, s{S_HO}, 4096')
            a(f's_add_u32 s{S_HE}, s{S_HE}, 4096')
        off = f' offset:{1024 * (n & 3)}' if n & 3 else ''
        a(f's_cmp_gt_u32 s{S_R2}, {n}')
        a(f's_cselect_b32 s{S_XO}, s{S_HO}, s{S_HE}')
        a(f'buffer_load_dwordx4 {vr(G_H + 4 * (n % HRING), 4)}, v{t}, s[{SWS}:{SWS + 3}], s{S_XO} offen{off}{HLD}')
    queue = []
    for n in range(HPF):
        hload(n)
        queue.append(('h', n))
    chk = G_CHK
    a(f'v_mov_b32 v{chk + 4}, {FL_R34}')
    GO = opt('go', 26)
    told = False
    for n in range(43):
        queue = queue[queue.index(('h', n)) + 1:]
        newer = 4 * len([m for m in range(n + 1, n + AHEAD) if NPRE <= m < 43])
        if n + AHEAD in (20, 28):
            newer = 0
        a(f's_waitcnt vmcnt({len(queue)}) lgkmcnt({newer})')
        if not late and not told and not any(q[0] == 'w' for q in queue):
            assert n < 24
            signal(a, FL_R4)
            told = True
        if n == GO:
            signal(a, FL_GO)
        if n == opt('f6', 20):
            a(';@F 6')
        if n + AHEAD in (20, 28):
            a(f'v_and_b32 v{chk}, v{chk}, v{chk + 1}')
            a(f'v_and_b32 v{chk + 2}, v{chk + 2}, v{chk + 3}')
            a(f'v_and_b32 v{chk}, v{chk}, v{chk + 2}')
            a(f'v_cmp_eq_u32 vcc, 0, v{chk}')
            a(f's_cbranch_vccz L_r{n}_out')
            a(f's_mov_b32 s{S_SPIN}, {SPIN_MAX}')
            a(f'L_r{n}:')
            a(f'ds_read_b128 {vr(chk, 4)}, v{chk + 4} offset:{0 if n < 20 else FL_R4 - FL_R34}')
            a(f's_sub_u32 s{S_SPIN}, s{S_SPIN}, 1')
            a(f's_cbranch_scc1 L_r{n}_out')
            a('s_waitcnt lgkmcnt(0)')
            a(f'v_and_b32 v{chk}, v{chk}, v{chk + 1}')
            a(f'v_and_b32 v{chk + 2}, v{chk + 2}, v{chk + 3}')
            a(f'v_and_b32 v{chk}, v{chk}, v{chk + 2}')
            a(f'v_cmp_eq_u32 vcc, 0, v{chk}')
            a(f's_cbranch_vccnz L_r{n}')
            a(f'L_r{n}_out:')
        reads = wd_reads(n + AHEAD, wfrag(n + AHEAD)) if NPRE <= n + AHEAD < 43 else []
        for e in range(2):
            c = '0' if n == 0 else vr(G_ACC + 16 * e, 16)
            a(f'v_mfma_f32_32x32x16_bf16 {vr(G_ACC + 16 * e, 16)}, {vr(wfrag(n) + 4 * e, 4)}, {vr(G_H + 4 * (n % HRING), 4)}, {c}')
            a.all(reads[2 * e:2 * e + 2])
        if n + AHEAD + 1 in (20, 28):
            a(f'ds_read_b128 {vr(chk, 4)}, v{chk + 4} offset:{0 if n < 20 else FL_R4 - FL_R34}')
        if n + HPF < 43:
            hload(n + HPF)
            queue.append(('h', n + HPF))
        if late and n % opt('lper', 1) == 0:
            a.all(wd_piece(late.pop(0)))
            queue.append(('w', n))
        if n == XRES:
            queue += [('x', 0), ('x', 1)]
            a(f'buffer_load_dwordx4 {vr(G_X, 4)}, v{t + 1}, s[{SX}:{SX + 3}], 0 offen')
            a(f'buffer_load_dwordx4 {vr(G_X + 4, 4)}, v{t + 1}, s[{SX}:{SX + 3}], 0 offen offset:16')
    a(';@T 11')
    a(f's_lshl_b32 s{S_T0}, s{S_TH}, 1')
    a(f's_add_u32 s{S_T0}, s{S_T0}, s{S_KH}')
    a(f's_lshl_b32 s{S_T0}, s{S_T0}, 12')
    a(f's_xor_b32 s{S_T1}, s{S_T0}, 4096')
    a(f's_add_u32 s{S_T1}, s{S_T1}, {PX}')
    a(f'v_add_u32 v{t + 2}, s{S_T1}, v{t}')
    a(f's_add_u32 s{S_T1}, s{S_T0}, {PX}')
    a(f'v_add_u32 v{t + 3}, s{S_T1}, v{t}')
    a(f's_add_u32 s{S_T1}, s{S_T0}, {YB}')
    a(f'v_add_u32 v{t + 4}, s{S_T1}, v{t}')
    a('s_nop 3')
    for i in range(4):
        a(f'ds_write_b128 v{t + 2}, {vr(G_ACC + 16 + 4 * i, 4)} offset:{1024 * i}')
    po, yy, xx = G_PRE, G_PRE + 16, G_PRE + 32
    a('s_waitcnt lgkmcnt(0)')
    a('s_barrier')
    a(';@T 12')
    for i in range(4):
        a(f'ds_read_b128 {vr(po + 4 * i, 4)}, v{t + 3} offset:{1024 * i}')
    for i in range(4):
        a(f'ds_read_b128 {vr(yy + 4 * i, 4)}, v{t + 4} offset:{1024 * i}')
    o = G_ACC
    for i in range(4):
        a(f's_waitcnt lgkmcnt({7 - i})')
        for v in range(4 * i, 4 * i + 4):
            a(f'v_add_f32 v{o + v}, v{o + v}, v{po + v}')
        for v in range(4 * i, 4 * i + 4):
            a(f'v_mul_f32 v{po + v}, 0xbfb8aa3b, v{o + v}')
        for v in range(4 * i, 4 * i + 4):
            a(f'v_exp_f32 v{po + v}, v{po + v}')
    for v in range(16):
        a(f'v_add_f32 v{po + v}, 1.0, v{po + v}')
    for v in range(16):
        a(f'v_rcp_f32 v{po + v}, v{po + v}')
    a('s_waitcnt vmcnt(0) lgkmcnt(0)')
    for i in range(8):
        a(f'v_lshlrev_b32 v{xx + 2 * i}, 16, v{G_X + i}')
        a(f'v_and_b32 v{xx + 2 * i + 1}, 0xffff0000, v{G_X + i}')
    for half in range(2):
        for v in range(8 * half, 8 * half + 8):
            a(f'v_mul_f32 v{o + v}, v{o + v}, v{po + v}')
        for v in range(8 * half, 8 * half + 8):
            a(f'v_fmac_f32 v{xx + v}, v{o + v}, v{yy + v}')
        for i in range(4 * half, 4 * half + 4):
            a(f'v_cvt_pk_bf16_f32 v{G_WF + i}, v{xx + 2 * i}, v{xx + 2 * i + 1}')
        off = ' offset:16' if half else ''
        a(f'buffer_store_dwordx4 {vr(G_WF + 4 * half, 4)}, v{t + 1}, s[{SO}:{SO + 3}], 0 offen{off}')
    a('s_endpgm')


def head(a, s, part='xw'):
    slot = s % 3
    if 'x' in part:
        a(f's_add_u32 s{S_WO}, s{S_ROT}, {s}')
        a(f's_and_b32 s{S_WO}, s{S_WO}, 7')
        a(f's_add_u32 m0, s{S_MX}, {slot * 16384}')
        a(f's_lshl_b32 s{S_XO}, s{S_WO}, 7')
        for i in range(4):
            off = f' offset:{1024 * i}' if i else ''
            a(f'buffer_load_dwordx4 v{H_XD + i}, s[{SX}:{SX + 3}], s{S_XO} offen{off}{NTX} lds')
    if 'w' not in part:
        return
    a(f's_add_u32 m0, s{S_MW}, {slot * 24576}')
    a(f's_mul_i32 s{S_WO}, s{S_WO}, {64 * 2752}')
    for i in range(2):
        off = f' offset:{1024 * i}' if i else ''
        a(f'buffer_load_dwordx4 v{H_WD + i}, s[{SW}:{SW + 3}], s{S_WO} offen{off}{NTW} lds')


def tail(a, s):
    slot = s % 3
    a(f's_add_u32 m0, s{S_MW}, {slot * 24576}')
    a(f's_add_u32 s{S_WP}, s{S_WO}, {16 * 2752}')
    a(f'buffer_load_dwordx4 v{H_WD + 2}, s[{SW}:{SW + 3}], s{S_WO} offen offset:2048{NTW} lds')
    a(f's_add_u32 m0, s{S_MW}, {slot * 24576 + 3072}')
    a('s_nop 0')
    for i in range(3):
        off = f' offset:{1024 * i}' if i else ''
        a(f'buffer_load_dwordx4 v{H_WD + i}, s[{SW}:{SW + 3}], s{S_WP} offen{off}{NTW} lds')


def wd_piece(n):
    return [f's_cmp_gt_u32 s{S_R2}, {n}', f's_cselect_b32 s{S_XO}, s{S_DO}, s{S_DB}',
            f's_add_u32 m0, s{S_DM}, {DP[n] * 4096}', f's_add_u32 s{S_XO}, s{S_XO}, {n * 16384}',
            f'buffer_load_dwordx4 v{H_DD}, s[{SD}:{SD + 3}], s{S_XO} offen lds']


def matrices():
    t = V_T
    g = [f'v_and_b32 v{t + 2}, 31, v{V_L}',
         f'v_cvt_f32_u32 v{t + 2}, v{t + 2}',
         f'v_mul_f32 v{t + 2}, 0x3d000000, v{t + 2}',
         f'v_lshrrev_b32 v{t + 3}, 5, v{V_L}',
         f'v_lshlrev_b32 v{t + 3}, 2, v{t + 3}',
         f'v_cvt_f32_u32 v{t + 3}, v{t + 3}',
         f'v_mul_f32 v{t + 3}, v{t + 3}, v{t + 2}']
    for v in range(16):
        g += [f'v_fmamk_f32 v{t + 4 + (v & 1)}, v{t + 2}, {fhex(8 * (v >> 2) + (v & 3))}, v{t + 3}',
              f'v_cos_f32 v{H_TW + v}, v{t + 4 + (v & 1)}',
              f'v_sin_f32 v{H_TW + 16 + v}, v{t + 4 + (v & 1)}']
    return g


def scale_matrices(rj):
    g = [f'v_mul_f32 v{H_TW + v}, v{H_TW + v}, v{rj + (v & 15)}' for v in range(32)]
    g += [f'v_cvt_pk_bf16_f32 v{H_CM + i}, v{H_TW + 2 * i}, v{H_TW + 2 * i + 1}' for i in range(16)]
    return g


def weave(a, groups, chores):
    per = -(-len(chores) // len(groups))
    for i, g in enumerate(groups):
        a.all(g)
        a.all(chores[per * i:per * (i + 1)])


def lines(fn, *args):
    b = A()
    fn(b, *args)
    out, cur = [], []
    for x in b.l:
        cur.append(x.strip())
        if x.strip().startswith('buffer_'):
            out.append(cur)
            cur = []
    assert not cur
    return out


def twiddles():
    t = V_T
    g = [f's_cmp_ge_u32 s{S_CT}, 4',
         f's_cselect_b32 s{S_T2}, 0x80000000, 0',
         f's_or_b32 s{S_T2}, s{S_T2}, 0x3a000000',
         f'v_and_b32 v{t}, 31, v{V_L}',
         f's_lshl_b32 s{S_T0}, s{S_TH}, 5',
         f's_add_u32 s{S_T0}, s{S_T0}, s{S_R}',
         f'v_lshl_add_u32 v{t}, v{t}, 6, s{S_T0}',
         f'v_cvt_f32_u32 v{t}, v{t}',
         f'v_mul_f32 v{t}, s{S_T2}, v{t}',
         f'v_lshrrev_b32 v{t + 1}, 5, v{V_L}',
         f'v_cvt_f32_u32 v{t + 2}, v{t + 1}',
         f'v_mul_f32 v{t + 2}, v{t + 2}, v{t}',
         f'v_mul_f32 v{t + 3}, 0x42000000, v{t}',
         f'v_cmp_gt_u32 vcc, 32, v{V_L}']
    an, c, s = t + 4, H_C, H_C + 1
    for n in range(8):
        g += [f'v_fmamk_f32 v{an}, v{t}, {fhex(2 * n)}, v{t + 2}',
              f'v_add_f32 v{an + 1}, v{an}, v{t + 3}',
              f'v_sub_f32 v{an + 2}, v{t + 3}, v{an}']
        if n == 0:
            g += [f'v_mul_f32 v{an + 3}, 0.5, v{t + 3}',
                  f'v_cndmask_b32 v{an + 2}, v{an + 2}, v{an + 3}, vcc']
        g.append(f'v_add_f32 v{an + 3}, v{an + 2}, v{t + 3}')
        for q in range(4):
            g += [f'v_cos_f32 v{c + 2 * (q & 1)}, v{an + q}', f'v_sin_f32 v{s + 2 * (q & 1)}, v{an + q}']
            if q:
                g.append(f'v_cvt_pk_bf16_f32 v{H_TW + 4 * n + q - 1}, v{c + 2 * ((q - 1) & 1)}, v{s + 2 * ((q - 1) & 1)}')
        g += ['s_nop 0', f'v_cvt_pk_bf16_f32 v{H_TW + 4 * n + 3}, v{c + 2}, v{s + 2}']
    return g


def helper(a):
    t = V_T
    residues(a, S_RB, S_T0, S_T1)
    a(f's_cmp_ge_u32 s{S_TQ}, 2')
    a(f's_cselect_b32 s{S_S0}, s{S_T1}, s{S_T0}')
    a(f's_lshl_b32 s{S_T2}, s{S_TH}, 5')
    a(f's_add_u32 s{S_S0}, s{S_S0}, s{S_T2}')
    a(f'v_lshrrev_b32 v{t}, 3, v{V_L}')
    a(f'v_and_b32 v{t + 1}, 7, v{V_L}')
    a(f'v_lshrrev_b32 v{t + 2}, 4, v{V_L}')
    a(f'v_xor_b32 v{t + 3}, v{t + 1}, v{t + 2}')
    a(f'v_lshlrev_b32 v{t}, 16, v{t}')
    a(f's_lshl_b32 s{S_T0}, s{S_S0}, 10')
    a(f'v_add_u32 v{t}, s{S_T0}, v{t}')
    a(f'v_lshl_add_u32 v{H_XD}, v{t + 3}, 4, v{t}')
    a(f'v_xor_b32 v{H_XD + 1}, 64, v{H_XD}')
    a(f'v_add_u32 v{H_XD + 1}, {8 * 65536 - 1024}, v{H_XD + 1}')
    a(f'v_add_u32 v{H_XD + 2}, {16 * 65536 - 2048}, v{H_XD}')
    a(f'v_add_u32 v{H_XD + 3}, {16 * 65536 - 2048}, v{H_XD + 1}')
    a(f's_lshl_b32 s{S_MX}, s{S_TQ}, 12')
    a('s_waitcnt lgkmcnt(0)')
    srd(a, SX, 2097152)
    a(';@T 1')
    head(a, 0, 'x')
    a(f's_mul_i32 s{S_MW}, s{S_TH}, 12288')
    a(f's_mul_i32 s{S_T2}, s{S_KH}, 6144')
    a(f's_add_u32 s{S_MW}, s{S_MW}, s{S_T2}')
    a(f's_add_u32 s{S_MW}, s{S_MW}, {WR}')
    a(f's_mul_i32 s{S_T1}, s{S_KH}, {32 * 2752}')
    a(f's_lshl_b32 s{S_T2}, s{S_F0}, 5')
    a(f's_add_u32 s{S_T1}, s{S_T1}, s{S_T2}')
    a(f's_lshl_b32 s{S_T2}, s{S_TH}, 1')
    for i in range(3):
        a(f'v_add_u32 v{t}, {64 * i}, v{V_L}')
        a(f'v_mul_u32_u24 v{t + 1}, 171, v{t}')
        a(f'v_lshrrev_b32 v{t + 1}, 11, v{t + 1}')
        a(f'v_mul_u32_u24 v{t + 2}, 12, v{t + 1}')
        a(f'v_sub_u32 v{t + 2}, v{t}, v{t + 2}')
        a(f'v_xor_b32 v{t + 2}, s{S_T2}, v{t + 2}')
        a(f'v_mul_u32_u24 v{t + 1}, 2752, v{t + 1}')
        a(f'v_lshl_add_u32 v{t + 1}, v{t + 2}, 4, v{t + 1}')
        a(f'v_add_u32 v{H_WD + i}, s{S_T1}, v{t + 1}')
        if i:
            a(f'v_subrev_u32 v{H_WD + i}, {1024 * i}, v{H_WD + i}')
    a(f's_cmp_eq_u32 s{S_TH}, 0')
    a(f's_cselect_b32 s{SW}, s28, s30')
    a(f's_cselect_b32 s{SW + 1}, s29, s31')
    srd(a, SW, 512 * 2752)
    head(a, 0, 'w')
    tail(a, 0)
    a(f's_add_u32 s62, s{SWS}, {X_OFF}')
    a(f's_addc_u32 s63, s{SWS + 1}, 0')
    a(f's_load_dword s{S_TAG}, s[62:63], 0')
    srd(a, SWS, WS_BYTES)
    srd(a, SD, 1376 * 1024)
    phase2_tile(a)
    a(';@ARMED')
    a(f'v_and_b32 v{t}, 31, v{V_L}')
    a(f'v_lshrrev_b32 v{t + 1}, 5, v{V_L}')
    a(f'v_bfe_u32 v{t + 2}, v{V_L}, 1, 3')
    a(f'v_xor_b32 v{t + 2}, v{t + 2}, v{t + 1}')
    a(f'v_lshlrev_b32 v12, 4, v{t}')
    a(f'v_lshlrev_b32 v{t}, 7, v{t}')
    a(f'v_lshl_add_u32 v{t}, v{t + 2}, 4, v{t}')
    a(f'v_add_u32 v{H_XA}, s{S_MX}, v{t}')
    for k in range(1, 4):
        a(f'v_xor_b32 v{H_XA + k}, {32 * k}, v{H_XA}')
    wd_setup(a)
    a(f's_lshl_b32 s{S_HO}, s{S_RB}, 2')
    a(f's_add_u32 s{S_HO}, s{S_HO}, s{S_TQ}')
    a(f's_lshl_b32 s{S_HO}, s{S_HO}, 9')
    a(f's_add_u32 s{S_HO}, s{S_HO}, {SG_OFF}')
    a(f'v_lshrrev_b32 v{t}, 4, v{V_L}')
    a(f'v_and_b32 v{t + 1}, 15, v{V_L}')
    a(f'v_min_u32 v{t + 1}, 11, v{t + 1}')
    a(f'v_mul_u32_u24 v{t + 2}, 2752, v{t}')
    a(f'v_lshl_add_u32 v13, v{t + 1}, 4, v{t + 2}')
    a(f's_lshl_b32 s{S_T0}, s{S_KH}, 2')
    a(f'v_add_u32 v{t}, s{S_T0}, v{t}')
    a(f'v_mul_u32_u24 v{t}, 384, v{t}')
    a(f'v_lshl_add_u32 v{t}, v{t + 1}, 5, v{t}')
    a(f's_mul_i32 s{S_T0}, s{S_TH}, 3072')
    a(f's_add_u32 s{S_T0}, s{S_T0}, {CS}')
    a(f'v_add_u32 v14, s{S_T0}, v{t}')
    a(f's_lshl_b32 s{S_T3}, s{S_RB}, 1')
    a(f's_add_u32 s{S_T3}, s{S_T3}, s{S_KH}')
    a(f's_mul_i32 s{S_T3}, s{S_T3}, {16 * 2752}')
    a(f's_lshl_b32 s{S_T0}, s{S_F0}, 5')
    a(f's_add_u32 s{S_T3}, s{S_T3}, s{S_T0}')
    a.all(matrices())
    head(a, 1)
    for i in range(4):
        a(f'buffer_load_dwordx4 {vr(H_DA + 4 * i, 4)}, v13, s[{SW}:{SW + 3}], s{S_T3} offen')
        if i < 3:
            a(f's_add_u32 s{S_T3}, s{S_T3}, {4 * 2752}')
    a(';@T 2')
    a('s_waitcnt vmcnt(10) lgkmcnt(0)')
    a(f's_add_u32 s{S_TAG}, s{S_TAG}, 0x9e3779b9')
    a('s_barrier')
    a(';@T 3')
    q, u = H_FF, H_DA
    GS, N6 = opt('gs', 4), opt('n6', 8)
    for s in range(7):
        groups = lines(tail, s + 1)
        groups[0] = groups[0] + [f'ds_read_b128 {vr(H_XF + 16 * s + 4 * k, 4)}, v{H_XA + k} offset:{(s % 3) * 16384}' for k in range(4)]
        groups += lines(head, s + 2) if s + 2 < 8 else [wd_piece(n) for n in range(N6)]
        c = A()
        post = A()
        younger = 6
        if s == 1:
            for i in range(4):
                for j in range(4):
                    src = H_DA + 4 * i + j
                    if i == 0:
                        c(f'v_lshlrev_b32 v{q + 2 * j}, 16, v{src}')
                        c(f'v_and_b32 v{q + 2 * j + 1}, 0xffff0000, v{src}')
                    else:
                        c(f'v_lshlrev_b32 v{q + 8}, 16, v{src}')
                        c(f'v_and_b32 v{q + 9}, 0xffff0000, v{src}')
                        c(f'v_add_f32 v{q + 2 * j}, v{q + 2 * j}, v{q + 8}')
                        c(f'v_add_f32 v{q + 2 * j + 1}, v{q + 2 * j + 1}, v{q + 9}')
            c(f'ds_write_b128 v14, {vr(q, 4)}')
            c(f'ds_write_b128 v14, {vr(q + 4, 4)} offset:16')
        if s == 2:
            c(f'v_bfe_u32 v{t}, v{V_L}, 4, 1')
            c(f'v_mul_u32_u24 v{t}, 3072, v{t}')
            c(f'v_bfe_u32 v{t + 1}, v{V_L}, 2, 1')
            c(f'v_lshl_add_u32 v{t}, v{t + 1}, 5, v{t}')
            c(f'v_bfe_u32 v{t + 1}, v{V_L}, 3, 1')
            c(f'v_lshl_add_u32 v{t}, v{t + 1}, 4, v{t}')
            c(f'v_and_b32 v{t + 1}, 3, v{V_L}')
            c(f'v_lshl_add_u32 v{t}, v{t + 1}, 2, v{t}')
            c(f'v_add_u32 v{t}, {CS}, v{t}')
            c(f'v_lshrrev_b32 v{t + 1}, 5, v{V_L}')
            c(f'v_lshl_add_u32 v{t + 2}, v{t + 1}, 7, v{t}')
            c(f'v_mul_u32_u24 v{t + 1}, 320, v{t + 1}')
            c(f'v_add_u32 v{t + 1}, v{t + 1}, v{t}')
            for bi in range(3):
                for p in range(8):
                    ad, off = (t + 2, 64 * (bi + 1)) if bi < 2 else (t + 1, 0)
                    c(f'ds_read_b32 v{(u, u + 8, q + 4)[bi] + p}, v{ad} offset:{off + 384 * p}')
                c('s_waitcnt lgkmcnt(4)')
            c('s_waitcnt lgkmcnt(0)')
            for bi in range(3):
                r = (u, u + 8, q + 4)[bi]
                for p in range(4):
                    c(f'v_add_f32 v{r + p}, v{r + p}, v{r + 4 + p}')
                c(f'v_add_f32 v{r}, v{r}, v{r + 2}')
                c(f'v_add_f32 v{r + 1}, v{r + 1}, v{r + 3}')
                c(f'v_add_f32 v{q + bi}, v{r}, v{r + 1}')
            c(f'v_mov_b32 v{q + 3}, s{S_TAG}')
            c(f'v_lshlrev_b32 v13, 4, v{V_L}')
            c(f's_lshl_b32 s{S_T3}, s{S_CS}, 14')
            c(f's_add_u32 s{S_T3}, s{S_T3}, {CG_OFF}')
            c(f's_lshl_b32 s{S_T0}, s{S_RB}, 10')
            c(f's_add_u32 s{S_T0}, s{S_T0}, s{S_T3}')
            c(f's_lshl_b32 s{S_T1}, s{S_TQ}, 4')
            post(f's_lshl_b64 exec, 0xffff, s{S_T1}')
            post(f'buffer_store_dwordx4 {vr(q, 4)}, v13, s[{SWS}:{SWS + 3}], s{S_T0} offen sc1')
            post('s_mov_b64 exec, -1')
            post(f's_lshl_b32 s{S_T0}, s{S_TQ}, 12')
            post(f's_add_u32 s{S_T3}, s{S_T3}, s{S_T0}')
            younger = 7
        if s == GS:
            post(f'buffer_load_dwordx4 {vr(H_SG, 4)}, v12, s[{SWS}:{SWS + 3}], s{S_HO} offen sc1')
            for i in range(4):
                off = f' offset:{1024 * i}' if i else ''
                post(f'buffer_load_dwordx4 {vr(H_DA + 4 * i, 4)}, v13, s[{SWS}:{SWS + 3}], s{S_T3} offen{off} sc1')
            younger = 11
            if 'noc3' not in EXP:
                c(f's_mul_i32 s{S_T0}, s{S_TQ}, 11')
                c(f'v_add_u32 v{t}, s{S_T0}, v{V_L}')
                c(f'v_min_u32 v{t}, 42, v{t}')
                c(f's_add_u32 s{S_T0}, s{S_T0}, 10')
                c(f'v_min_u32 v{t}, s{S_T0}, v{t}')
                c(f'v_lshlrev_b32 v{t}, 10, v{t}')
                c(f's_lshr_b32 s{S_T0}, s2, 3')
                c(f's_mul_i32 s{S_T0}, s{S_T0}, {43 * 1024}')
                post(f'buffer_load_dword v247, v{t}, s[{SD}:{SD + 3}], s{S_T0} offen offset:384')
                younger = 12
        if s == GS + 1:
            post('s_waitcnt vmcnt(10)')
            stat_check(post, 'hstat', [H_SG], 12, S_HO)
            post(f'v_and_b32 v{t}, 31, v{V_L}')
            post(f's_lshl_b32 s{S_HF}, s{S_TQ}, 7')
            post(f's_add_u32 s{S_HF}, s{S_HF}, {RS}')
            post(f'v_lshl_add_u32 v{t}, v{t}, 2, s{S_HF}')
            post(f'ds_write_b32 v{t}, v{H_SG + 2}')
            post(f'v_lshrrev_b32 v{t + 2}, 5, v{V_L}')
            post(f'v_lshl_add_u32 v{t + 2}, v{t + 2}, 4, s{S_HF}')
            for i in range(4):
                post(f'ds_read_b128 {vr(q + 4 * i, 4)}, v{t + 2} offset:{32 * i}')
            stat_check(post, 'hcol', [H_DA + 4 * i for i in range(4)], 13, S_T3, 1024)
            for j in range(3):
                post(f'v_add_f32 v{H_DA + j}, v{H_DA + j}, v{H_DA + 4 + j}')
                post(f'v_add_f32 v{H_DA + 8 + j}, v{H_DA + 8 + j}, v{H_DA + 12 + j}')
            post(f's_lshl_b32 s{S_T0}, s{S_TQ}, 10')
            post(f's_add_u32 s{S_T0}, s{S_T0}, {CS}')
            post(f'v_add_u32 v14, s{S_T0}, v13')
            for j in range(3):
                post(f'v_add_f32 v{H_DA + j}, v{H_DA + j}, v{H_DA + 8 + j}')
            post(f'ds_write_b128 v14, {vr(H_DA, 4)}')
        if s == GS + 2:
            c.all(scale_matrices(q))
        if s == 6:
            younger = N6
        weave(a, groups, [x.strip() for x in c.l])
        a.l += post.l
        if s == opt('bs', -1):
            a(';@B 11')
        a(f's_waitcnt vmcnt({younger}) lgkmcnt(0)')
        if s == opt('bs', -1):
            a(';@B 5')
        a('s_barrier')
        if s == opt('bs', -1):
            a(';@B 6')
        if s == opt('bs', -1) - 1:
            a(';@B 4')
        if s in (0, 3, 6):
            a(f';@T {4 + s // 3}')
    for k in range(4):
        a(f'ds_read_b128 {vr(H_XF + 112 + 4 * k, 4)}, v{H_XA + k} offset:16384')
    for n in range(N6, 10):
        a.all(wd_piece(n))
    a('s_waitcnt lgkmcnt(0)')
    signal(a, FL_S7 + 16)
    for n in range(10, 20):
        a.all(wd_piece(n))
    nextra = 0
    if 'wdtouch' in EXP:
        a(f's_bfe_u32 s{S_T0}, s2, 0x20006')
        a(f's_lshl_b32 s{S_T0}, s{S_T0}, 2')
        a(f's_add_u32 s{S_T0}, s{S_T0}, s{S_TQ}')
        a(f's_mul_i32 s{S_T0}, s{S_T0}, 56')
        a(f'v_min_u32 v{t}, 55, v{V_L}')
        a(f'v_add_u32 v{t}, s{S_T0}, v{t}')
        a(f'v_lshrrev_b32 v{t + 1}, 5, v{t}')
        a(f's_sub_u32 s{S_T0}, 58, s{S_R2}')
        a(f'v_add_u32 v{t + 1}, s{S_T0}, v{t + 1}')
        a(f'v_subrev_u32 v{t + 2}, 43, v{t + 1}')
        a(f'v_min_u32 v{t + 1}, v{t + 1}, v{t + 2}')
        a(f'v_and_b32 v{t + 2}, 15, v{t}')
        a(f'v_lshl_add_u32 v{t + 1}, v{t + 1}, 4, v{t + 2}')
        a(f'v_bfe_u32 v{t + 2}, v{t}, 4, 1')
        a(f'v_mul_u32_u24 v{t + 2}, 688, v{t + 2}')
        a(f'v_add_lshl_u32 v{t + 1}, v{t + 1}, v{t + 2}, 10')
        a(f's_lshl_b32 s{S_T0}, s{S_CT}, 7')
        a(f'buffer_load_dword v247, v{t + 1}, s[{SD}:{SD + 3}], s{S_T0} offen')
        nextra = 1
    a(f'v_lshlrev_b32 v{t + 1}, 4, v{V_L}')
    a(f'v_add_u32 v{t + 1}, {FM}, v{t + 1}')
    lds_spin(a, 's7', FL_S7, 8, H_DA, 1 * opt('nap', 1))
    a(';@T 7')
    da, ff = H_DA, H_FF
    for n in range(3):
        a(f'ds_read_b128 {vr(ff + 4 * n, 4)}, v{t + 1} offset:{1024 * n}')
    late = [wd_piece(n) for n in range(20, 28)]
    for n in range(32):
        if n + 3 < 32:
            a(f'ds_read_b128 {vr(ff + 4 * ((n + 3) & 3), 4)}, v{t + 1} offset:{1024 * (n + 3)}')
        a(f's_waitcnt lgkmcnt({min(3, 31 - n)})')
        c = '0' if n == 0 else vr(da, 16)
        a(f'v_mfma_f32_32x32x16_bf16 {vr(da, 16)}, {vr(H_XF + 4 * n, 4)}, {vr(ff + 4 * (n & 3), 4)}, {c}')
        if n == opt('r3', 22):
            lds_spin(a, 'st', FL_ST, 4, H_TW)
        if n >= opt('r3', 22) and late:
            a.all(late.pop(0))
        if n == opt('hsig', 2):
            a(f's_waitcnt vmcnt({nextra}) lgkmcnt(0)')
            signal(a, FL_H)
            a('s_waitcnt lgkmcnt(0)')
    a(';@T 8')
    a(f'v_and_b32 v{t + 4}, 15, v{V_L}')
    a(f'v_lshlrev_b32 v{t + 4}, 4, v{t + 4}')
    a(f'v_and_b32 v{t + 5}, 16, v{V_L}')
    a(f'v_lshl_add_u32 v{t + 4}, v{t + 5}, 8, v{t + 4}')
    a(f'v_lshrrev_b32 v{t + 5}, 5, v{V_L}')
    a(f'v_lshl_add_u32 v{t + 4}, v{t + 5}, 10, v{t + 4}')
    a(f's_lshl_b32 s{S_T1}, s{S_TQ}, 2')
    a(f's_add_u32 s{S_T1}, s{S_T1}, {UB}')
    a(f'v_add_u32 v{t + 4}, s{S_T1}, v{t + 4}')
    a('s_nop 2')
    a(';@F 4')
    z, p1, p2 = H_XF, H_XF + 16, H_XF + 32
    for i in range(8):
        a(f'v_cvt_pk_bf16_f32 v{z + i}, v{da + 2 * i}, v{da + 2 * i + 1}')
    a('s_nop 0')
    a(f'v_mfma_f32_32x32x16_bf16 {vr(p1, 16)}, {vr(H_CM, 4)}, {vr(z, 4)}, 0')
    a(f'v_mfma_f32_32x32x16_bf16 {vr(p1, 16)}, {vr(H_CM + 4, 4)}, {vr(z + 4, 4)}, {vr(p1, 16)}')
    a(f'v_mfma_f32_32x32x16_bf16 {vr(p2, 16)}, {vr(H_SM, 4)}, {vr(z, 4)}, 0')
    a(f'v_mfma_f32_32x32x16_bf16 {vr(p2, 16)}, {vr(H_SM + 4, 4)}, {vr(z + 4, 4)}, {vr(p2, 16)}')
    a('s_nop 9')
    for i in range(8):
        a(f'v_permlane16_swap_b32 v{p1 + i}, v{p1 + 8 + i}')
    for i in range(8):
        a(f'v_permlane16_swap_b32 v{p2 + i}, v{p2 + 8 + i}')
    for i in range(8):
        a(f'v_add_f32 v{p1 + i}, v{p1 + i}, v{p2 + 8 + i}')
        a(f'v_sub_f32 v{p1 + 8 + i}, v{p1 + 8 + i}, v{p2 + i}')
    for i in range(8):
        a(f'v_cvt_pk_bf16_f32 v{z + i}, v{p1 + i}, v{p1 + 8 + i}')
    for i in range(8):
        a(f'ds_write_b32 v{t + 4}, v{z + i} offset:{(8 * (i >> 2) + (i & 3)) * 256}')
    a('s_waitcnt lgkmcnt(0)')
    signal(a, FL_UW)
    a(';@F 5')
    a(f's_lshl_b32 s{S_T1}, s{S_TQ}, 6')
    a(f'v_add_u32 v{t}, s{S_T1}, v{V_L}')
    a(f'v_lshlrev_b32 v{t + 1}, 4, v{t}')
    a(f'v_lshrrev_b32 v{t + 2}, 4, v{t}')
    a(f'v_lshlrev_b32 v{t + 2}, 16, v{t + 2}')
    a(f'v_and_b32 v{t + 3}, 15, v{t}')
    a(f'v_lshl_add_u32 v{t + 2}, v{t + 3}, 4, v{t + 2}')
    a(f's_lshl_b32 s{S_T1}, s{S_RB}, 12')
    a(f's_lshl_b32 s{S_T2}, s{S_CS}, 8')
    a(f's_add_u32 s{S_T1}, s{S_T1}, s{S_T2}')
    a(f's_add_u32 s{S_T1}, s{S_T1}, {U_OFF}')
    a(f's_add_u32 s{S_T2}, s{S_T1}, {16 << 16}')
    a(';@F 6')
    lds_spin(a, 'uw', FL_UW, 4, H_DA, 1 * opt('nap', 1))
    a(f'ds_read_b128 {vr(z, 4)}, v{t + 1} offset:{UB}')
    a(f'ds_read_b128 {vr(z + 4, 4)}, v{t + 1} offset:{UB + 4096}')
    a('s_waitcnt lgkmcnt(1)')
    a(f'buffer_store_dwordx4 {vr(z, 4)}, v{t + 2}, s[{SWS}:{SWS + 3}], s{S_T1} offen sc1')
    a('s_waitcnt lgkmcnt(0)')
    a(f'buffer_store_dwordx4 {vr(z + 4, 4)}, v{t + 2}, s[{SWS}:{SWS + 3}], s{S_T2} offen sc1')
    a(';@T 9')
    tw = twiddles()
    a.all(tw[:14 + 2 + 17 * opt('tw1', 4)])
    a(f'v_mov_b32 v{H_SG}, v{t}')
    a(f'v_mov_b32 v{H_SG + 1}, v{t + 2}')
    a(f'v_mov_b32 v{H_SG + 2}, v{t + 3}')
    uf, ya = H_XF + 48, H_XF + 96
    a(f'v_bfe_u32 v{t}, v{V_L}, 2, 1')
    a(f'v_bfe_u32 v{t + 3}, v{V_L}, 3, 2')
    a(f'v_and_b32 v{t + 2}, 3, v{V_L}')
    a(f'v_lshl_add_u32 v{t + 2}, v{t}, 4, v{t + 2}')
    a(f'v_lshl_add_u32 v{t + 2}, v{t + 3}, 2, v{t + 2}')
    a(f's_lshl_b32 s{S_T0}, s{S_CT}, 6')
    a(f's_lshl_b32 s{S_T1}, s{S_KH}, 5')
    a(f's_add_u32 s{S_T0}, s{S_T0}, s{S_T1}')
    a(f'v_add_u32 v{t + 2}, s{S_T0}, v{t + 2}')
    a(f'v_cmp_eq_u32 vcc, 0, v{t + 2}')
    a(f's_sub_u32 s{S_T1}, 32, s{S_R}')
    a(f's_and_b32 s{S_T1}, s{S_T1}, 31')
    a(f's_cmp_ge_u32 s{S_CT}, 4')
    a(f's_cselect_b32 s{S_T1}, s{S_T1}, s{S_R}')
    a(f's_cselect_b32 s{S_T3}, -1, 0')
    a(f'v_xor_b32 v{t + 2}, s{S_T3}, v{t + 2}')
    a(f'v_subrev_u32 v{t + 2}, s{S_T3}, v{t + 2}')
    a(f'v_and_b32 v{t + 2}, 255, v{t + 2}')
    a(f'v_lshlrev_b32 v{t + 2}, 4, v{t + 2}')
    a(f'v_lshrrev_b32 v{t + 1}, 5, v{V_L}')
    a(f'v_lshl_add_u32 v{t + 2}, v{t + 1}, 12, v{t + 2}')
    a(f'v_mov_b32 v{t + 3}, 0x7ff00000')
    a(f's_bfe_u32 s{S_T2}, s{S_T1}, 0x20002')
    a(f's_lshl_b32 s{S_T2}, s{S_T2}, {UFL + 4}')
    a(f's_add_u32 s{S_T2}, s{S_T2}, {UF_OFF}')
    a(f's_lshl_b32 s{S_HO}, s{S_T1}, 16')
    a(f's_add_u32 s{S_HO}, s{S_HO}, {U_OFF}')
    a(f'v_cndmask_b32 v{t + 2}, v{t + 2}, v{t + 3}, vcc')
    a(f's_lshl_b32 s{S_T0}, s{S_TH}, 1')
    a(f's_add_u32 s{S_T0}, s{S_T0}, s{S_KH}')
    a(f's_lshl_b32 s{S_T0}, s{S_T0}, 12')
    a(f's_add_u32 s{S_T0}, s{S_T0}, {YB}')
    a(f'v_lshl_add_u32 v{t}, v{V_L}, 4, s{S_T0}')
    a(f's_lshl_b32 s{S_T1}, s{S_TQ}, 4')
    a(f's_add_u32 s{S_T1}, s{S_T1}, s{S_CS}')
    a(f's_lshl_b32 s{S_T1}, s{S_T1}, {4 if UFS == 7 else 5}')
    a(f's_add_u32 s{S_T1}, s{S_T1}, s{S_RB}')
    a(f's_lshl_b32 s{S_T1}, s{S_T1}, {UFS}')
    a(f's_add_u32 s{S_T1}, s{S_T1}, {UF_OFF}')
    a('s_waitcnt vmcnt(0)')
    flag_store(a, S_T1, H_DA)
    signal(a, FL_R34)
    a(';@T 10')
    for x in tw[14 + 2 + 17 * opt('tw1', 4):]:
        for old, new in ((t + 3, H_SG + 2), (t + 2, H_SG + 1), (t, H_SG)):
            x = re.sub(rf'\bv{old}\b', f'v{new}', x)
        a(x)
    if 'nou' in EXP:
        a('s_barrier')
        a('s_endpgm')
    a(f's_cmp_eq_u32 s{S_W}, 5')
    a('s_cbranch_scc0 L_upoll_other')
    a(f's_xor_b32 s{S_T0}, s{S_CT}, s{S_T3}')
    a(f's_and_b32 s{S_T0}, s{S_T0}, 3')
    a(f's_lshl_b32 s{S_T0}, s{S_T0}, {UFL + 2}')
    a(f'v_lshrrev_b32 v{H_FF + 4}, 4, v{V_L}')
    a(f'v_lshl_add_u32 v{H_FF + 4}, v{H_FF + 4}, {UFL}, s{S_T0}')
    a(f'v_and_b32 v{H_FF + 5}, 15, v{V_L}')
    a(f'v_lshl_add_u32 v{H_FF + 4}, v{H_FF + 5}, {UFS}, v{H_FF + 4}')
    a(f's_add_u32 s{S_T0}, s{S_T0}, {4 << UFL}')
    a(f's_and_b32 s{S_T0}, s{S_T0}, {(16 << UFL) - 1}')
    a(f'v_lshl_add_u32 v{H_FF + 5}, v{H_FF + 5}, {UFS}, s{S_T0}')
    if opt('go', 26) >= 0:
        lds_spin(a, 'go', FL_GO, 4, H_DA, 3 * opt('nap', 1))
    else:
        a(f's_sleep {opt("uslp", 8)}')
    a(f's_mov_b32 s{S_SPIN}, {SPIN_MAX}')
    a('L_upoll:')
    a(f'buffer_load_dword v{H_FF}, v{H_FF + 4}, s[{SWS}:{SWS + 3}], s{S_T2} offen sc1')
    a('s_mov_b64 exec, 0xffff')
    a(f'buffer_load_dword v{H_FF + 1}, v{H_FF + 5}, s[{SWS}:{SWS + 3}], s{S_T2} offen sc1')
    a('s_mov_b64 exec, -1')
    a(f's_sub_u32 s{S_SPIN}, s{S_SPIN}, 1')
    a('s_cbranch_scc1 L_upoll_out')
    a('s_waitcnt vmcnt(0)')
    a(f'v_cmp_ne_u32 s[62:63], s{S_TAG}, v{H_FF + 1}')
    a(f'v_cmp_ne_u32 vcc, s{S_TAG}, v{H_FF}')
    a('s_and_b32 s62, s62, 0xffff')
    a('s_or_b32 s62, s62, vcc_lo')
    a('s_or_b32 s62, s62, vcc_hi')
    a('s_cbranch_scc0 L_upoll_out')
    a(f's_sleep {opt("uslp", 8)}')
    a('s_branch L_upoll')
    a('L_upoll_out:')
    a('s_waitcnt vmcnt(0)')
    a(f'v_mov_b32 v{H_FF}, {FL_UG}')
    a(f'v_mov_b32 v{H_FF + 2}, 1')
    a(f'v_mov_b32 v{H_FF + 3}, 1')
    a(f'ds_write_b64 v{H_FF}, {vr(H_FF + 2, 2)}')
    a(f'ds_write_b64 v{H_FF}, {vr(H_FF + 2, 2)} offset:8')
    a('L_upoll_other:')
    lds_spin(a, 'ug', FL_UG, 4, H_DA, 3 * opt('nap', 1))
    a(';@T 12')
    for n in range(8):
        a(f'buffer_load_dwordx4 {vr(uf + 4 * n, 4)}, v{t + 2}, s[{SWS}:{SWS + 3}], s{S_HO} offen sc1')
        if n < 7:
            a(f's_add_u32 s{S_HO}, s{S_HO}, 8192')
    for n in range(8):
        a(f's_waitcnt vmcnt({7 - n})')
        c = '0' if n == 0 else vr(ya, 16)
        a(f'v_mfma_f32_32x32x16_bf16 {vr(ya, 16)}, {vr(uf + 4 * n, 4)}, {vr(H_TW + 4 * n, 4)}, {c}')
    a('s_nop 11')
    for i in range(4):
        a(f'ds_write_b128 v{t}, {vr(ya + 4 * i, 4)} offset:{1024 * i}')
    a('s_waitcnt lgkmcnt(0)')
    a(';@T 13')
    a('s_barrier')
    a(f's_lshl_b32 s{S_T0}, s2, 3')
    a(f's_add_u32 s{S_T0}, s{S_T0}, s{S_W}')
    a(f's_cmp_eq_u32 s{S_T0}, 6')
    a('s_cbranch_scc0 L_end')
    a(f'v_lshrrev_b32 v{H_DA + 4}, 4, v{V_L}')
    a(f'v_lshlrev_b32 v{H_DA + 4}, {UFL}, v{H_DA + 4}')
    a(f'v_and_b32 v{H_DA + 5}, 15, v{V_L}')
    a(f'v_lshl_add_u32 v{H_DA + 4}, v{H_DA + 5}, {UFS}, v{H_DA + 4}')
    a(f's_mov_b32 s{S_SPIN}, {SPIN_MAX}')
    a('L_apoll:')
    for i in range(4):
        a(f's_mov_b32 s{S_T0}, {UF_OFF + (4 << UFL) * i}')
        a(f'buffer_load_dword v{H_DA + i}, v{H_DA + 4}, s[{SWS}:{SWS + 3}], s{S_T0} offen sc1')
    a(f's_sub_u32 s{S_SPIN}, s{S_SPIN}, 1')
    a('s_cbranch_scc1 L_end')
    a('s_waitcnt vmcnt(0)')
    for i in range(4):
        a(f'v_xor_b32 v{H_DA + i}, s{S_TAG}, v{H_DA + i}')
    a(f'v_or3_b32 v{H_DA}, v{H_DA}, v{H_DA + 1}, v{H_DA + 2}')
    a(f'v_or_b32 v{H_DA}, v{H_DA}, v{H_DA + 3}')
    a(f'v_cmp_ne_u32 vcc, 0, v{H_DA}')
    a('s_cbranch_vccnz L_apoll')
    a(f's_mov_b32 s{S_T1}, {X_OFF}')
    flag_store(a, S_T1, H_DA)


def kernel():
    a = A()
    t = V_T
    a(f'{KNAME}_kernel:')
    a('s_cmp_ge_u32 s2, 256')
    a('s_cbranch_scc1 L_end')
    a(f's_load_dwordx2 s[{SX}:{SX + 1}], s[0:1], 0')
    a('s_load_dwordx4 s[28:31], s[0:1], 48')
    a(f's_load_dwordx2 s[{SD}:{SD + 1}], s[0:1], 64')
    a(f's_load_dwordx2 s[{SO}:{SO + 1}], s[0:1], 72')
    a(f's_load_dwordx2 s[{SWS}:{SWS + 1}], s[0:1], 88')
    if 'noicpf' not in EXP:
        a('s_getpc_b64 s[4:5]')
        a('s_and_b32 s5, s5, 0xffff')
        a('s_mov_b32 s6, L_end - . + 16')
        a('s_mov_b32 s7, 0x20000')
        a(f's_lshr_b32 s{S_T0}, s2, 3')
        a(f's_lshl_b32 s{S_T0}, s{S_T0}, 10')
        a(f'v_lshlrev_b32 v{t}, 7, v0')
        a('v_cmp_gt_u32 vcc, 8, v0')
        a('s_and_saveexec_b64 s[62:63], vcc')
        a('s_cbranch_execz L_nopf')
        a(f'buffer_load_dword v247, v{t}, s[4:7], s{S_T0} offen')
        a('L_nopf:')
        a('s_mov_b64 exec, s[62:63]')
    a(f'v_lshrrev_b32 v{t}, 6, v0')
    a(f'v_and_b32 v{V_L}, 63, v0')
    a(f'v_readfirstlane_b32 s{S_W}, v{t}')
    a(f's_and_b32 s{S_T0}, s2, 7')
    a(f's_lshr_b32 s{S_T1}, s2, 3')
    if 'own' in EXP:
        a(f's_lshl_b32 s{S_RB}, s{S_T0}, 1')
        a(f's_lshr_b32 s{S_T2}, s2, 7')
        a(f's_add_u32 s{S_RB}, s{S_RB}, s{S_T2}')
        a(f's_and_b32 s{S_CS}, s{S_T1}, 15')
    else:
        a(f's_and_b32 s{S_RB}, s{S_T0}, 1')
        a(f's_lshl_b32 s{S_RB}, s{S_RB}, 3')
        a(f's_and_b32 s{S_T2}, s{S_T1}, 7')
        a(f's_add_u32 s{S_RB}, s{S_RB}, s{S_T2}')
        a(f's_lshr_b32 s{S_CS}, s{S_T0}, 1')
        a(f's_lshl_b32 s{S_CS}, s{S_CS}, 2')
        a(f's_lshr_b32 s{S_T2}, s{S_T1}, 3')
        a(f's_add_u32 s{S_CS}, s{S_CS}, s{S_T2}')
    a(f's_and_b32 s{S_TQ}, s{S_W}, 3')
    a(f's_and_b32 s{S_TH}, s{S_W}, 1')
    a(f's_bfe_u32 s{S_KH}, s{S_W}, 0x10001')
    a(f's_mul_i32 s{S_F0}, s{S_CS}, 171')
    a(f's_lshr_b32 s{S_F0}, s{S_F0}, 6')
    a(f's_lshl_b32 s{S_F0}, s{S_F0}, 1')
    groups = opt('rot', 1)
    if 'rotrb' in EXP:
        a(f's_mov_b32 s{S_ROT}, s{S_RB}')
    else:
        a(f's_add_u32 s{S_ROT}, s{S_RB}, s{S_CS}')
    a(f's_and_b32 s{S_ROT}, s{S_ROT}, {min(groups, 4) - 1}')
    a(f's_lshl_b32 s{S_ROT}, s{S_ROT}, {dict([(1, 0), (2, 2), (4, 1), (8, 1)])[groups]}')
    if groups == 8:
        a(f's_bfe_u32 s{S_T2}, s{S_RB}, 0x10002')
        a(f's_add_u32 s{S_ROT}, s{S_ROT}, s{S_T2}')
    a(f's_cmp_ge_u32 s{S_W}, 4')
    a('s_cbranch_scc0 L_compute')
    helper(a)
    a('s_endpgm')
    a('L_compute:')
    compute_prologue(a)
    compute_loop(a)
    gemm2(a)
    a('L_end:')
    a('s_endpgm')
    return a.text()


def build():
    name = KNAME + '_kernel'
    s = HEADER
    s += '; @launch grid=(256,1,1) block=(512,1,1) lds=163840\n'
    s += '.amdgcn_target "amdgcn-amd-amdhsa--gfx950"\n.text\n'
    s += f'.globl {name}\n.p2align 8\n.type {name},@function\n' + kernel()
    s += f'''.section .rodata,"a"
.p2align 6
.amdhsa_kernel {name}
  .amdhsa_next_free_vgpr 256
  .amdhsa_next_free_sgpr 64
  .amdhsa_accum_offset 256
  .amdhsa_group_segment_fixed_size 0
  .amdhsa_kernarg_size 96
  .amdhsa_user_sgpr_count 2
  .amdhsa_user_sgpr_kernarg_segment_ptr 1
  .amdhsa_system_sgpr_workgroup_id_x 1
.end_amdhsa_kernel
'''
    return s


if __name__ == '__main__':
    out = sys.argv[1] if len(sys.argv) > 1 else 'k4.s'
    open(out, 'w').write(build())
    print('wrote', out)
```
